```python
import torch

def _softmax(x, axis=-1):
    return torch.softmax(x, dim=axis)
def _gelu(x):
    return torch.nn.functional.gelu(x, approximate="tanh")
def _silu(x):
    return torch.nn.functional.silu(x)
def _sigmoid(x):
    return torch.sigmoid(x)
def _layernorm(x, axis=-1, eps=1e-5):
    m = x.mean(dim=axis, keepdim=True)
    v = x.var(dim=axis, keepdim=True, unbiased=False)
    return (x - m) / torch.sqrt(v + eps)
def _scatter_add(tgt, idx, src, axis=0):
    return tgt.clone().index_add_(axis, idx, src)
def _segment_sum(src, seg, n):
    out = torch.zeros((n,) + src.shape[1:], dtype=src.dtype)
    return out.index_add_(0, seg, src)
def _pad(x, pw):
    flat = tuple(v for pair in reversed(pw) for v in pair)
    return torch.nn.functional.pad(x, flat)

kernel_name = 'sequential_preLN__ssm_conv_h3__glu_gated_reglu__prompt'

def setup_inputs():

    _w = (lambda a: (lambda t: t.to(torch.bfloat16) if t.is_floating_point() else t)(torch.as_tensor(a)))
    def _A_setup():
        B, S, D = 1, 2048, 576
        ks = 4
        return {
            "q": _w((lambda *s: torch.randn(*s, dtype=torch.bfloat16) * 0.05)(B, S, D)),
            "k": _w((lambda *s: torch.randn(*s, dtype=torch.bfloat16) * 0.2)(B, S, D)),
            "v": _w((lambda *s: torch.randn(*s, dtype=torch.bfloat16) * 0.2)(B, S, D)),
            "shift_k": _w((lambda *s: torch.randn(*s, dtype=torch.bfloat16) * 0.2)(D, ks) * 0.5),
            "ssm_k": _w((lambda *s: torch.randn(*s, dtype=torch.bfloat16) * 0.4)(D, S) * (1.0 / S ** 0.5)),
            "ssm_D": _w((lambda *s: torch.randn(*s, dtype=torch.bfloat16) * 0.2)(D)),
        }
    _A_in = _A_setup()

    def _B_setup():
        B, S, D, F = 1, 2048, 576, 4608
        return {
            "x": _w((lambda *s: torch.randn(*s, dtype=torch.bfloat16) * 0.05)(B, S, D)),
            "W_gate": _w((lambda *s: torch.randn(*s, dtype=torch.bfloat16) * 0.2)(D, F) * (2.0 / D) ** 0.5),
            "W_up": _w((lambda *s: torch.randn(*s, dtype=torch.bfloat16) * 0.2)(D, F) * (2.0 / D) ** 0.5),
            "W_down": _w((lambda *s: torch.randn(*s, dtype=torch.bfloat16) * 0.2)(F, D) * (1.0 / F) ** 0.5),
        }
    _B_in = _B_setup()

    return {
        "A_q": _A_in["q"],
        "A_k": _A_in["k"],
        "A_v": _A_in["v"],
        "A_shift_k": _A_in["shift_k"],
        "A_ssm_k": _A_in["ssm_k"],
        "A_ssm_D": _A_in["ssm_D"],
        "B_x": _B_in["x"],
        "B_W_gate": _B_in["W_gate"],
        "B_W_up": _B_in["W_up"],
        "B_W_down": _B_in["W_down"],
    }

def reference(A_q, A_k, A_v, A_shift_k, A_ssm_k, A_ssm_D, B_x, B_W_gate, B_W_up, B_W_down):
    def _A_ref(q, k, v, shift_k, ssm_k, ssm_D):
        B, S, D = q.shape
        ks = shift_k.shape[-1]
        k_pad = _pad(k, ((0, 0), (ks - 1, 0), (0, 0)))
        k_shift = torch.zeros_like(k)
        for t in range(ks):
            k_shift = k_shift + k_pad[:, t:t + S, :] * shift_k[:, ks - 1 - t][None, None, :]
        kv = k_shift * v
        L = 2 * S
        kv_pad = _pad(kv, ((0, 0), (0, S), (0, 0)))
        kf_pad = _pad(ssm_k, ((0, 0), (0, S)))
        kv_f = (lambda x, axes=(-2,-1): torch.fft.rfft2(x.float(), dim=axes))(kv_pad[:, None, :, :], axes=(1, 2))
        kf_f = (lambda x, axes=(-2,-1): torch.fft.rfft2(x.float(), dim=axes))(kf_pad[:, None, :], axes=(1, 2))
        kf_f = (lambda x, *d: x.permute(*d))(kf_f, 1, 2, 0)
        y_f = kv_f * kf_f[None, :, :, :]
        y = (lambda x, s, axes=(-2,-1): torch.fft.irfft2(x, s=s, dim=axes).to(torch.bfloat16))(y_f, (1, L), axes=(1, 2))[:, 0, :S, :]
        y = y + kv * ssm_D[None, None, :]
        return q * y

    def _B_ref(x, W_gate, W_up, W_down):
        gate = torch.einsum("bsd,df->bsf", x, W_gate)
        up = torch.einsum("bsd,df->bsf", x, W_up)
        gate = gate * (lambda x, dt: x.to(dt))(gate > 0, gate.dtype)
        h = gate * up
        return torch.einsum("bsf,fd->bsd", h, W_down)

    x = A_q
    h = x + _A_ref(_layernorm(x, axis=-1), A_k, A_v, A_shift_k, A_ssm_k, A_ssm_D)
    h2 = h + _B_ref(_layernorm(h, axis=-1), B_W_gate, B_W_up, B_W_down)
    return h2
```

```python
NAME = "sequential_preLN__ssm_conv_h3__glu_gated_reglu__prompt"
def kernel_header(name):
    return f".globl {name}\n.p2align 8\n.type {name},@function\n{name}:\n"
def kernel_desc(name, vgpr, sgpr=102, accum=None):
    if accum is None: accum = min(256, (vgpr + 3) // 4 * 4)
    return f""".p2align 6
.amdhsa_kernel {name}
  .amdhsa_next_free_vgpr {vgpr}
  .amdhsa_next_free_sgpr {sgpr}
  .amdhsa_accum_offset {accum}
  .amdhsa_group_segment_fixed_size 0
  .amdhsa_kernarg_size 104
  .amdhsa_user_sgpr_count 2
  .amdhsa_user_sgpr_kernarg_segment_ptr 1
  .amdhsa_system_sgpr_workgroup_id_x 1
.end_amdhsa_kernel
"""
def single(body, grid, block, lds, vgpr=256, accum=None):
    n = NAME + "_kernel"
    return (f"; @launch grid=({grid},1,1) block=({block},1,1) lds={lds}\n"
            '.amdgcn_target "amdgcn-amd-amdhsa--gfx950"\n.text\n' + kernel_header(n) + body +
            '\n.section .rodata,"a"\n' + kernel_desc(n, vgpr, 102, accum))
```

```python
import re

class Tok:
    __slots__ = ("kind", "idx")
    def __init__(self, kind, idx): self.kind = kind; self.idx = idx

class Asm:
    def __init__(self):
        self.lines = []
        self.vm_issued = 0; self.vm_done = 0
        self.lg_issued = 0; self.lg_done = 0
    def __call__(self, s):
        for l in s.strip("\n").split("\n"):
            l = l.strip()
            if l: self.lines.append(l)
    def vm(self, s):
        self(s); self.vm_issued += 1
        assert self.vm_issued - self.vm_done <= 63, "vmcnt overflow"
        return Tok("vm", self.vm_issued)
    def lg(self, s):
        self(s); self.lg_issued += 1
        return Tok("lg", self.lg_issued)
    def wait(self, *toks):
        v = max([t.idx for t in toks if t is not None and t.kind == "vm"], default=0)
        l = max([t.idx for t in toks if t is not None and t.kind == "lg"], default=0)
        parts = []
        if v > self.vm_done:
            parts.append(f"vmcnt({self.vm_issued - v})"); self.vm_done = v
        if l > self.lg_done:
            n = self.lg_issued - l
            n = min(n, 15)
            parts.append(f"lgkmcnt({n})"); self.lg_done = self.lg_issued - n
        if parts: self("s_waitcnt " + " ".join(parts))
    def wait_all(self, vm=True, lg=True):
        parts = []
        if vm: parts.append("vmcnt(0)"); self.vm_done = self.vm_issued
        if lg: parts.append("lgkmcnt(0)"); self.lg_done = self.lg_issued
        self("s_waitcnt " + " ".join(parts))
    def text(self):
        out = []
        for l in self.lines:
            out.append(l if l.endswith(":") else "    " + l)
        return "\n".join(out) + "\n"

def vr(base, n=1, f="v"):
    return f"{f}{base}" if n == 1 else f"{f}[{base}:{base+n-1}]"
def ar(base, n=1): return vr(base, n, "a")
def sr(base, n=1): return vr(base, n, "s")

_REG = re.compile(r"\b([vas])(?:(\d+)\b|\[(\d+):(\d+)\])")
def regs_of(op):
    out = []
    for m in _REG.finditer(op):
        f = m.group(1)
        if m.group(2) is not None: out.append((f, int(m.group(2))))
        else: out += [(f, i) for i in range(int(m.group(3)), int(m.group(4)) + 1)]
    if re.search(r"\bvcc\b", op): out.append(("s", "vcc"))
    if re.search(r"\bm0\b", op): out.append(("s", "m0"))
    if re.search(r"\bexec\b", op): out.append(("s", "exec"))
    return out

def split_ops(rest):
    ops = []; depth = 0; cur = ""
    for ch in rest:
        if ch in "[(": depth += 1
        if ch in "])": depth -= 1
        if ch == "," and depth == 0: ops.append(cur.strip()); cur = ""
        else: cur += ch
    if cur.strip(): ops.append(cur.strip())
    return ops

TRANS = ("v_exp_f32", "v_log_f32", "v_rcp_f32", "v_rsq_f32", "v_sqrt_f32", "v_sin_f32", "v_cos_f32")
def parse(line):
    line = line.split(";")[0].strip()
    if not line or line.endswith(":") or line.startswith("."): return None
    p = line.split(None, 1)
    mn = p[0]; rest = p[1] if len(p) > 1 else ""
    ops = split_ops(rest)
    d = dict(mn=mn, line=line, defs=[], uses=[], cls="other", srcc=[], ab=[])
    if mn.startswith("v_mfma"):
        d["cls"] = "mfma"; d["defs"] = regs_of(ops[0]); d["ab"] = regs_of(ops[1]) + regs_of(ops[2]); d["srcc"] = regs_of(ops[3])
        d["uses"] = d["ab"] + d["srcc"]; d["passes"] = 8 if "32x32x16" in mn else 4
        d["c0"] = ops[3]; d["d0"] = ops[0]
    elif mn.startswith("v_"):
        d["cls"] = "valu"
        if mn.startswith("v_cmp"):
            d["defs"] = regs_of(ops[0]); d["uses"] = sum((regs_of(o) for o in ops[1:]), [])
        elif mn.startswith("v_permlane") and "swap" in mn:
            d["defs"] = regs_of(ops[0]) + regs_of(ops[1]); d["uses"] = list(d["defs"])
        elif "_co_" in mn:
            d["defs"] = regs_of(ops[0]) + regs_of(ops[1]); d["uses"] = sum((regs_of(o) for o in ops[2:]), [])
        else:
            d["defs"] = regs_of(ops[0]); d["uses"] = sum((regs_of(o) for o in ops[1:]), [])
            if mn.startswith(("v_fmac", "v_dot2c", "v_writelane")) or "dpp" in mn or "dpp" in line or "row_" in line or "quad_perm" in line: d["uses"] += regs_of(ops[0])
        d["dpp"] = ("dpp" in mn) or ("row_" in line) or ("quad_perm" in line) or ("wave_" in line)
    elif mn.startswith(("buffer_", "global_", "flat_")):
        d["cls"] = "vmem"
        if mn in ("buffer_wbl2", "buffer_inv"): return d
        lds = re.search(r"\blds\b", line) or "_lds_" in mn
        if "store" in mn or ("atomic" in mn and "sc0" not in line):
            d["uses"] = sum((regs_of(o) for o in ops), [])
            d["store_data"] = regs_of(ops[0]) if mn.startswith("buffer") else regs_of(ops[1])
            d["wide"] = ("x3" in mn or "x4" in mn)
        elif lds:
            d["uses"] = sum((regs_of(o) for o in ops), []) + [("s", "m0")]
        else:
            d["defs"] = regs_of(ops[0]); d["uses"] = sum((regs_of(o) for o in ops[1:]), [])
            if "atomic" in mn: d["uses"] += regs_of(ops[0])
    elif mn.startswith("ds_"):
        d["cls"] = "ds"
        if "write" in mn: d["uses"] = sum((regs_of(o) for o in ops), [])
        else: d["defs"] = regs_of(ops[0]); d["uses"] = sum((regs_of(o) for o in ops[1:]), [])
    elif mn.startswith("s_"):
        d["cls"] = "salu"
        if mn == "s_nop": d["n"] = int(ops[0], 0) + 1
        elif mn.startswith(("s_cmp", "s_cbranch", "s_branch", "s_waitcnt", "s_barrier", "s_endpgm", "s_sleep", "s_setprio")): d["uses"] = sum((regs_of(o) for o in ops), [])
        else:
            d["defs"] = regs_of(ops[0]) if ops else []; d["uses"] = sum((regs_of(o) for o in ops[1:]), [])
            if "saveexec" in mn: d["defs"].append(("s", "exec"))
    return d

def check_hazards(lines, name=""):
    ins = [p for p in (parse(l) for l in lines) if p]
    pos = []; t = 0
    for i in ins:
        pos.append(t); t += i.get("n", 1)
    errs = []
    W = 24
    for j, c in enumerate(ins):
        for i in range(j - 1, max(-1, j - W), -1):
            p = ins[i]
            dist = pos[j] - pos[i] - p.get("n", 1)
            if dist >= 20: break
            need = 0; why = ""
            pd = set(p["defs"]); cu = set(c["uses"]); cd = set(c["defs"])
            if p["cls"] == "valu":
                vd = {r for r in pd if r[0] in "va"}; sd = {r for r in pd if r[0] == "s"}
                if c["cls"] == "mfma" and vd & cu: need, why = 2, "valu->mfma"
                if c["cls"] == "valu" and c.get("dpp") and vd & cu: need, why = 2, "valu->dpp"
                if c["cls"] == "valu" and c["mn"].startswith("v_permlane") and vd & cu: need, why = 2, "valu->permlane"
                if c["mn"].startswith(("v_readlane", "v_readfirstlane")) and vd & cu: need, why = max(need, 1), "valu->readlane"
                if p["mn"].startswith(TRANS) and c["cls"] == "valu" and vd & cu: need, why = max(need, 1), "trans->valu"
                if ("sdwa" in p["mn"] or "op_sel" in p["line"]) and c["cls"] == "valu" and vd & cu and "dst_sel:DWORD" not in p["line"] and "op_sel_hi" not in p["line"]: need, why = max(need, 1), "sdwa->valu"
                if p["mn"].startswith("v_dot") and c["cls"] in ("valu", "vmem", "ds", "mfma") and vd & (cu | cd):
                    same_c = c["mn"] == p["mn"] and not (vd & set(sum((regs_of(o) for o in split_ops(c["line"].split(None, 1)[1])[1:3]), [])))
                    if not same_c: need, why = max(need, 3), "dot->other"
                if sd & cu:
                    if c["cls"] == "vmem": need, why = 5, "valu sgpr->vmem"
                    elif c["cls"] == "valu": need, why = max(need, 4 if c["mn"].startswith(("v_readlane", "v_writelane")) else 2), "valu sgpr->valu"
                if ("s", "exec") in pd and c["cls"] == "mfma": need, why = 4, "exec->mfma"
            if p["cls"] == "salu" and ("s", "m0") in pd and c["cls"] == "vmem" and ("s", "m0") in cu: need, why = 1, "m0->dma"
            if p["cls"] == "vmem" and p.get("wide") and set(p["store_data"]) & cd:
                need, why = (2 if c["cls"] in ("valu", "mfma") else 1), "store WAR"
            if p["cls"] == "mfma":
                n = p["passes"]
                if c["cls"] == "mfma":
                    if pd & set(c["ab"]): need, why = n + 4, "mfma D->AB"
                    elif pd & set(c["srcc"]) and not (c["c0"] == p["d0"] and c["passes"] == n): need, why = n + 2, "mfma D->C overlap"
                    elif pd & cd and c["c0"] != p["d0"]: need, why = n + 2, "mfma WAW"
                elif c["cls"] in ("valu", "vmem", "ds") and pd & (cu | cd): need, why = n + 4, "mfma D->valu/mem"
                if c["cls"] == "valu" and set(p["srcc"]) & cd: need, why = max(need, n - 1), "mfma srcC WAR"
            if dist < need:
                errs.append(f"{name}: {why}: need {need} have {dist}:\n    {p['line']}\n    {c['line']}")
    return errs
```

```python
import sys
sys.path.insert(0, "work")
from fw import *
import gen
from gen import *

G2_DEPTH = 6
G2_LDS = 4 * G2_DEPTH * 4096
def g2():
    a = Asm()
    a("s_cmp_ge_u32 s2, 240")
    a("s_cbranch_scc1 G2_end")
    a("s_and_b32 s34, s2, 7")
    a("s_lshr_b32 s35, s2, 3")
    a("s_mul_i32 s34, s34, 30")
    a("s_add_u32 s34, s34, s35")
    a("s_cmp_ge_u32 s34, 234")
    a("s_cbranch_scc1 G2_end")
    stamp_init(a)
    a("s_load_dwordx4 s[4:7], s[0:1], 72")
    a("s_load_dwordx2 s[32:33], s[0:1], 96")
    a("v_lshrrev_b32 v1, 6, v0")
    a("v_and_b32 v2, 63, v0")
    a("v_readfirstlane_b32 s36, v1")
    a("s_mul_hi_u32 s35, s34, 0x1C71C71D")
    a("s_mul_i32 s37, s35, 9")
    a("s_sub_u32 s37, s34, s37")
    a("s_mul_i32 s38, s35, 720")
    a("s_mul_i32 s39, s36, 36")
    a("s_add_u32 s38, s38, s39")
    a("s_lshl_b32 s38, s38, 10")
    a(f"s_add_u32 s38, s38, {HH_OFF}")
    for t in range(5): a(f"s_add_u32 s{40+t}, s38, {t*147456}")
    a("v_lshlrev_b32 v3, 4, v2")
    a("v_lshrrev_b32 v4, 3, v2")
    a("v_mul_u32_u24 v4, 1152, v4")
    a("v_bfe_u32 v5, v2, 1, 2")
    a("v_bfe_u32 v6, v2, 4, 1")
    a("v_xor_b32 v5, v5, v6")
    a("v_and_b32 v6, 1, v2")
    a("v_lshl_add_u32 v4, v6, 4, v4")
    a("v_lshl_add_u32 v8, v5, 5, v4")
    a("v_xor_b32 v5, 2, v5")
    a("v_lshl_add_u32 v9, v5, 5, v4")
    a("v_add_u32 v9, 9216, v9")
    a(f"s_mul_i32 s45, s36, {1152*1152}")
    a("s_lshl_b32 s46, s37, 7")
    a("s_add_u32 s45, s45, s46")
    a(f"s_mul_i32 s47, s36, {G2_DEPTH*4096}")
    a("s_waitcnt lgkmcnt(0)")
    stamp(a, 1)
    srd(a, 8, 4, 5, F * D * 2)
    srd(a, 12, 6, 7, SD_BYTES)
    srd(a, 24, 32, 33, WS_BYTES)
    HB = 0
    wtok = {}; htok = {}
    def issue(ks):
        sl = ks % G2_DEPTH
        for i in range(4):
            a(f"s_add_u32 m0, s47, {sl*4096 + i*1024}")
            if i % 2 == 0: a(f"s_add_u32 s50, s45, {(32*ks + 8*i)*1152}")
            else: a("s_nop 0")
            wtok[ks] = a.vm(f"buffer_load_dwordx4 v{8 + i%2}, s[8:11], s50 offen lds")
        for t in range(5):
            r = HB + sl * 20 + 4 * t
            if ks % 4 == 0 and ks > 0: a(f"s_add_u32 s{40+t}, s{40+t}, 4096")
            htok[(ks, t)] = a.vm(f"buffer_load_dwordx4 a[{r}:{r+3}], v3, s[24:27], s{40+t} offen offset:{(ks%4)*1024}")
    for ks in range(G2_DEPTH - 1): issue(ks)
    a("v_lshrrev_b32 v4, 4, v2")
    a("v_bfe_u32 v5, v2, 2, 2")
    a("v_lshl_add_u32 v6, v4, 3, v5")
    a("v_lshlrev_b32 v6, 7, v6")
    a("v_and_b32 v7, 3, v2")
    a("v_lshl_add_u32 v6, v7, 3, v6")
    a("v_add_u32 v6, s47, v6")
    a("v_lshrrev_b32 v5, 1, v5")
    a("v_and_b32 v7, 1, v4")
    a("v_lshl_or_b32 v5, v7, 1, v5")
    AA = 10
    for dt in range(4):
        a(f"v_xor_b32 v7, {dt}, v5")
        a(f"v_lshl_add_u32 v{AA+dt}, v7, 5, v6")
    a("v_and_b32 v14, 15, v2")
    a("s_mul_i32 s51, s35, 80")
    a("v_add_u32 v14, s51, v14")
    a("s_lshl_b32 s52, s37, 6")
    a("s_lshl_b32 s53, s36, 4")
    a("s_add_u32 s52, s52, s53")
    a("v_lshl_add_u32 v15, v4, 2, s52")
    a("v_lshlrev_b32 v16, 12, v15")
    a("v_lshl_add_u32 v16, v14, 1, v16")
    a("v_lshlrev_b32 v17, 2, v14")
    a("v_mul_u32_u24 v18, 1152, v14")
    a("v_lshl_add_u32 v18, v15, 1, v18")
    AR = 20
    ACC = 52
    atok = {}
    def aread(ks, dt):
        sl = ks % G2_DEPTH
        r = AR + (ks % 2) * 16 + 4 * dt
        a.lg(f"ds_read_b64_tr_b16 v[{r}:{r+1}], v{AA+dt} offset:{sl*4096}")
        atok[(ks, dt)] = a.lg(f"ds_read_b64_tr_b16 v[{r+2}:{r+3}], v{AA+dt} offset:{sl*4096+512}")
    a.wait(wtok[0])
    stamp(a, 2)
    for dt in range(4): aread(0, dt)
    for ks in range(36):
        sl = ks % G2_DEPTH
        for dt in range(4):
            for t in range(5):
                a.wait(atok[(ks, dt)], htok[(ks, t)])
                ra = AR + (ks % 2) * 16 + 4 * dt; rb = HB + sl * 20 + 4 * t; acc = ACC + 4 * (5 * dt + t)
                src = "0" if ks == 0 else f"v[{acc}:{acc+3}]"
                a(f"v_mfma_f32_16x16x32_bf16 v[{acc}:{acc+3}], v[{ra}:{ra+3}], a[{rb}:{rb+3}], {src}")
                if t == 0 and dt == 0 and ks + G2_DEPTH - 1 < 36:
                    issue(ks + G2_DEPTH - 1)
                if t == 2 and ks + 1 < 36:
                    if dt == 0: a.wait(wtok[ks + 1])
                    aread(ks + 1, dt)
    stamp(a, 3)
    HR = 132
    R2 = 152
    a(f"s_mov_b32 s54, {HT_OFF}")
    a(f"s_mov_b32 s55, {HT_OFF + 4096}")
    a(f"s_mov_b32 s56, {HT_OFF + 8192}")
    a(f"s_mov_b32 s57, {HT_OFF + 12288}")
    a(f"s_mov_b32 s58, {R2_OFF}")
    for t in range(5):
        for r in range(4):
            a.vm(f"buffer_load_ushort v{HR+4*t+r}, v16, s[24:27], s{54+r} offen offset:{32*t}")
        tr = a.vm(f"buffer_load_dword v{R2+t}, v17, s[24:27], s58 offen offset:{64*t}")
    a("s_barrier")
    a("s_mul_i32 s59, s36, 20480")
    a("v_lshl_add_u32 v19, v2, 4, s59")
    a("s_nop 4")
    for dt in range(4):
        for t in range(5):
            acc = ACC + 4 * (5 * dt + t)
            a.lg(f"ds_write_b128 v19, v[{acc}:{acc+3}] offset:{dt*5120 + t*1024}")
    a.wait_all(vm=False)
    a("s_barrier")
    a("s_mul_i32 s59, s36, 5120")
    a("v_lshl_add_u32 v19, v2, 4, s59")
    a("v_add_u32 v10, 40960, v19")
    tt = {}
    for t in range(5):
        for w in range(4):
            r = ACC + 4 * (4 * t + w)
            tt[t] = a.lg(f"ds_read_b128 v[{r}:{r+3}], v{19 if w < 2 else 10} offset:{(w%2)*20480 + t*1024}")
    a.wait(tr)
    for t in range(5):
        a.wait(tt[t])
        b = ACC + 16 * t
        for r in range(4):
            a(f"v_add_f32 v{b+r}, v{b+r}, v{b+4+r}")
            a(f"v_add_f32 v{b+8+r}, v{b+8+r}, v{b+12+r}")
            a(f"v_lshlrev_b32 v{HR+4*t+r}, 16, v{HR+4*t+r}")
        for r in range(4):
            a(f"v_add_f32 v{b+r}, v{b+r}, v{b+8+r}")
        for r in range(4):
            a(f"v_fmac_f32 v{HR+4*t+r}, v{b+r}, v{R2+t}")
        a(f"v_cvt_pk_bf16_f32 v{b}, v{HR+4*t}, v{HR+4*t+1}")
        a(f"v_cvt_pk_bf16_f32 v{b+1}, v{HR+4*t+2}, v{HR+4*t+3}")
        a.vm(f"buffer_store_dwordx2 v[{b}:{b+1}], v18, s[12:15], 0 offen")
        a(f"v_add_u32 v18, {16*1152}, v18")
    stamp(a, 4)
    stamp_flush(a, 3, 7, vt=(20, 21, 22, 23, 24, 25, 26, 27, 28))
    a("G2_end:")
    a("s_endpgm")
    return a, dict(name="g2_kernel", grid=240, block=256, lds=G2_LDS, vgpr=160 + 120, accum=160)

if __name__ == "__main__":
    build([k0(), k1(), g1(), g2()], "b.s")
    gen.STAMPS = True
    build([k0(), k1(), g1(), g2()], "b_st.s")
```

```python
import sys
sys.path.insert(0, "work")
from fw import *
from asmlib import *

S, D, F = 2048, 576, 4608
UT_OFF = 0x0000000
XT_OFF = 0x0240000
HT_OFF = 0x0480000
ST_OFF = 0x06C0000
CS_OFF = 0x06C8000
R2_OFF = 0x06C4000
HH_OFF = 0x0800000
WS_BYTES = 268435456
SD_BYTES = S * D * 2

STAMPS = False
STAMP_INS = 's_memrealtime'
ABL = set()
STAMP_OFF = 0x8000000
def stamp(a, i):
    if not STAMPS: return
    a(f"{STAMP_INS} s[{80+2*i}:{81+2*i}]")
    a("s_waitcnt lgkmcnt(0)"); a.lg_done = a.lg_issued
def stamp_init(a):
    if not STAMPS: return
    for i in range(1, 8): a(f"s_mov_b32 s{80+2*i}, 0")
    stamp(a, 0)
def stamp_flush(a, kidx, last, vt=(248, 249, 250, 251, 252, 253, 254, 255, 247), wsrd=24):
    if not STAMPS: return
    a("s_waitcnt vmcnt(0)")
    stamp(a, last)
    a("s_mov_b64 exec, 1")
    for i in range(8): a(f"v_mov_b32 v{vt[i]}, s{80+2*i}")
    a("s_lshl_b32 s96, s2, 3")
    a("s_add_u32 s96, s96, s36")
    a("s_lshl_b32 s96, s96, 5")
    a(f"s_add_u32 s96, s96, {STAMP_OFF + kidx*0x40000}")
    a(f"v_mov_b32 v{vt[8]}, 0")
    a(f"buffer_store_dwordx4 v[{vt[0]}:{vt[3]}], v{vt[8]}, s[{wsrd}:{wsrd+3}], s96 offen")
    a(f"buffer_store_dwordx4 v[{vt[4]}:{vt[7]}], v{vt[8]}, s[{wsrd}:{wsrd+3}], s96 offen offset:16")

def srd(a, d, lo, hi, size):
    a(f"s_mov_b32 s{d}, s{lo}")
    a(f"s_mov_b32 s{d+1}, s{hi}")
    a(f"s_mov_b32 s{d+2}, {size}")
    a(f"s_mov_b32 s{d+3}, 0x00020000")

def reduce32(a, v, tmp):
    for ctrl in ("quad_perm:[1,0,3,2]", "quad_perm:[2,3,0,1]", "row_half_mirror", "row_mirror"):
        a("s_nop 1")
        for r in v:
            a(f"v_add_f32_dpp v{r}, v{r}, v{r} {ctrl} row_mask:0xf bank_mask:0xf")
    for r, t in zip(v, tmp):
        a(f"v_mov_b32 v{t}, v{r}")
    a("s_nop 1")
    for r, t in zip(v, tmp):
        a(f"v_permlane16_swap_b32 v{r}, v{t}")
    a("s_nop 1")
    for r, t in zip(v, tmp):
        a(f"v_add_f32 v{r}, v{r}, v{t}")

def k0():
    a = Asm()
    a("s_cmp_ge_u32 s2, 288")
    a("s_cbranch_scc1 K0_end")
    stamp_init(a)
    a("s_load_dwordx4 s[4:7], s[0:1], 0")
    a("s_load_dwordx4 s[28:31], s[0:1], 16")
    a("s_load_dwordx2 s[32:33], s[0:1], 96")
    a("s_mul_hi_u32 s34, s2, 0x1C71C71D")
    a("s_mul_i32 s35, s34, 9")
    a("s_sub_u32 s35, s2, s35")
    a("v_lshrrev_b32 v1, 6, v0")
    a("s_mov_b32 s37, 1152")
    a("v_readfirstlane_b32 s36, v1")
    a("s_waitcnt lgkmcnt(0)")
    stamp(a, 1)
    srd(a, 8, 4, 5, SD_BYTES)
    srd(a, 24, 32, 33, WS_BYTES)
    a("s_cmp_ge_u32 s36, 4")
    a("s_cbranch_scc1 K0_stats")
    srd(a, 12, 6, 7, SD_BYTES)
    srd(a, 16, 28, 29, SD_BYTES)
    srd(a, 20, 30, 31, D * 8)
    a("v_and_b32 v1, 7, v0")
    a("v_lshrrev_b32 v2, 3, v0")
    a("s_lshl_b32 s38, s34, 6")
    a("v_lshl_add_u32 v3, v1, 3, s38")
    a("v_mul_lo_u32 v4, v3, s37")
    a("s_lshl_b32 s39, s35, 7")
    a("v_lshl_add_u32 v5, v2, 2, s39")
    a("v_add_u32 v4, v4, v5")
    a("v_subrev_u32 v6, 3456, v4")
    a("s_mov_b32 s40, 4608")
    K, V, Q, W = 10, 21, 29, 40
    a("v_lshlrev_b32 v7, 2, v5")
    tw = a.vm(f"buffer_load_dwordx4 v[{W}:{W+3}], v7, s[20:23], 0 offen")
    tk = []
    for j in range(3):
        tk.append(a.vm(f"buffer_load_dword v{K+j}, v6, s[12:15], 0 offen offset:{1152*j}"))
    for j in range(8):
        so = "0" if j < 4 else "s40"
        tk.append(a.vm(f"buffer_load_dword v{K+3+j}, v4, s[12:15], {so} offen offset:{1152*(j%4)}"))
    tv = []
    for j in range(8):
        so = "0" if j < 4 else "s40"
        tv.append(a.vm(f"buffer_load_dword v{V+j}, v4, s[16:19], {so} offen offset:{1152*(j%4)}"))
    tq = []
    for j in range(8):
        so = "0" if j < 4 else "s40"
        tq.append(a.vm(f"buffer_load_dword v{Q+j}, v4, s[8:11], {so} offen offset:{1152*(j%4)}"))
    a("v_lshlrev_b32 v8, 11, v5")
    a("v_lshl_add_u32 v8, v3, 1, v8")
    a("s_mov_b32 s41, 0xffff0000")
    a("s_mov_b32 s42, 0x05040100")
    a("s_mov_b32 s43, 0x07060302")
    a(f"s_mov_b32 s44, {UT_OFF}")
    a(f"s_mov_b32 s45, {UT_OFF + 4096}")
    a(f"s_mov_b32 s46, {XT_OFF}")
    a(f"s_mov_b32 s47, {XT_OFF + 4096}")
    WF = 44
    stamp(a, 2)
    a.wait(tw)
    stamp(a, 3)
    for c in range(2):
        for j in range(4):
            src = W + 2 * c + j // 2
            if j % 2 == 0: a(f"v_lshlrev_b32 v{WF+4*c+j}, 16, v{src}")
            else: a(f"v_and_b32 v{WF+4*c+j}, s41, v{src}")
    KF = 52
    for j in range(11):
        a.wait(tk[j])
        a(f"v_lshlrev_b32 v{KF+j}, 16, v{K+j}")
        a(f"v_and_b32 v{KF+11+j}, s41, v{K+j}")
    KS = 74
    for c in range(2):
        for j in range(8):
            a(f"v_mul_f32 v{KS+8*c+j}, v{WF+4*c+3}, v{KF+11*c+j}")
        for t in (2, 1, 0):
            for j in range(8):
                a(f"v_fmac_f32 v{KS+8*c+j}, v{WF+4*c+t}, v{KF+11*c+j+3-t}")
    VF = 90
    for j in range(8):
        a.wait(tv[j])
        a(f"v_lshlrev_b32 v{VF}, 16, v{V+j}")
        a(f"v_and_b32 v{VF+1}, s41, v{V+j}")
        a(f"v_mul_f32 v{KS+j}, v{KS+j}, v{VF}")
        a(f"v_mul_f32 v{KS+8+j}, v{KS+8+j}, v{VF+1}")
    O = 92
    for c in range(2):
        for i in range(4):
            a(f"v_cvt_pk_bf16_f32 v{O+4*c+i}, v{KS+8*c+7-2*i}, v{KS+8*c+6-2*i}")
    a.vm(f"buffer_store_dwordx4 v[{O}:{O+3}], v8, s[24:27], s44 offen")
    a.vm(f"buffer_store_dwordx4 v[{O+4}:{O+7}], v8, s[24:27], s45 offen")
    O2 = 100
    stamp(a, 4)
    a.wait(tq[7])
    for i in range(4):
        a(f"v_perm_b32 v{O2+i}, v{Q+2*i+1}, v{Q+2*i}, s42")
        a(f"v_perm_b32 v{O2+4+i}, v{Q+2*i+1}, v{Q+2*i}, s43")
    a.vm(f"buffer_store_dwordx4 v[{O2}:{O2+3}], v8, s[24:27], s46 offen")
    a.vm(f"buffer_store_dwordx4 v[{O2+4}:{O2+7}], v8, s[24:27], s47 offen")
    stamp(a, 5)
    stamp_flush(a, 0, 6, vt=(108, 109, 110, 111, 112, 113, 114, 115, 116))
    a("s_endpgm")
    a("K0_stats:")
    a.vm_issued = a.vm_done = 0
    a("s_cmp_ge_u32 s35, 8")
    a("s_cbranch_scc1 K0_end")
    a("v_lshrrev_b32 v1, 5, v0")
    a("s_lshl_b32 s38, s34, 6")
    a("s_lshl_b32 s39, s35, 3")
    a("s_add_u32 s38, s38, s39")
    a("s_sub_u32 s38, s38, 8")
    a("v_add_u32 v1, s38, v1")
    a("v_mul_lo_u32 v2, v1, s37")
    a("v_and_b32 v3, 31, v0")
    a("v_lshl_add_u32 v2, v3, 2, v2")
    X = 10
    tx = [a.vm(f"buffer_load_dword v{X+j}, v2, s[8:11], 0 offen offset:{128*j}") for j in range(9)]
    a("s_mov_b32 s41, 0xffff0000")
    XF = 20
    for j in range(9):
        a.wait(tx[j])
        a(f"v_lshlrev_b32 v{XF+2*j}, 16, v{X+j}")
        a(f"v_and_b32 v{XF+2*j+1}, s41, v{X+j}")
    a(f"v_add_f32 v40, v{XF}, v{XF+1}")
    a(f"v_add_f32 v41, v{XF+2}, v{XF+3}")
    for j in range(4, 18, 2):
        a(f"v_add_f32 v40, v40, v{XF+j}")
        a(f"v_add_f32 v41, v41, v{XF+j+1}")
    a("v_add_f32 v40, v40, v41")
    reduce32(a, [40], [42])
    a(f"v_mul_f32 v40, {1.0/576!r}, v40")
    for j in range(18):
        a(f"v_sub_f32 v{XF+j}, v{XF+j}, v40")
    a(f"v_mul_f32 v43, v{XF}, v{XF}")
    a(f"v_mul_f32 v44, v{XF+1}, v{XF+1}")
    for j in range(2, 18, 2):
        a(f"v_fmac_f32 v43, v{XF+j}, v{XF+j}")
        a(f"v_fmac_f32 v44, v{XF+j+1}, v{XF+j+1}")
    a("v_add_f32 v43, v43, v44")
    reduce32(a, [43], [42])
    a("v_mov_b32 v45, 0x3727c5ac")
    a(f"v_fmac_f32 v45, {1.0/576!r}, v43")
    a("v_rsq_f32 v46, v45")
    a("s_nop 0")
    a("v_mul_f32 v47, v40, v46")
    a("v_sub_f32 v47, 0, v47")
    a("v_lshlrev_b32 v4, 3, v1")
    a(f"s_mov_b32 s44, {ST_OFF}")
    a("v_cmp_eq_u32 vcc, 0, v3")
    a("s_and_saveexec_b64 s[48:49], vcc")
    a.vm("buffer_store_dwordx2 v[46:47], v4, s[24:27], s44 offen")
    stamp_flush(a, 0, 6, vt=(108, 109, 110, 111, 112, 113, 114, 115, 116))
    a("K0_end:")
    a("s_endpgm")
    return a, dict(name="k0_kernel", grid=288, block=512, lds=0, vgpr=120 if STAMPS else 108)

KC_STRIDE = 4160
K1_U = 4 * 4 * KC_STRIDE
K1_ST = K1_U + 4 * 4608
K1_LDS = K1_ST + 16384
def k1():
    a = Asm()
    a("s_cmp_ge_u32 s2, 252")
    a("s_cbranch_scc1 K1_end")
    stamp_init(a)
    a("s_load_dwordx4 s[4:7], s[0:1], 32")
    a("s_load_dwordx2 s[32:33], s[0:1], 96")
    a("s_load_dwordx4 s[28:31], s[0:1], 56")
    a("v_lshrrev_b32 v1, 6, v0")
    a("v_and_b32 v2, 63, v0")
    a("v_readfirstlane_b32 s36, v1")
    a("s_cmp_ge_u32 s2, 144")
    a("s_cbranch_scc1 K1_help")
    a("s_lshl_b32 s34, s2, 2")
    a("s_add_u32 s34, s34, s36")
    a("s_lshl_b32 s35, s34, 12")
    a("s_lshl_b32 s37, s34, 1")
    a("s_and_b32 s38, s37, 0xfffffffc")
    a("v_lshlrev_b32 v3, 4, v2")
    a("s_waitcnt lgkmcnt(0)")
    stamp(a, 1)
    a("s_load_dword s39, s[6:7], s38")
    srd(a, 8, 4, 5, SD_BYTES)
    srd(a, 24, 32, 33, WS_BYTES)
    a(f"s_mul_i32 s40, s36, {4*KC_STRIDE}")
    a("s_mul_i32 s41, s36, 4608")
    a(f"s_add_u32 s41, s41, {K1_U}")
    a("v_mov_b32 v4, 0")
    th = a.vm("buffer_load_dwordx2 v[10:11], v4, s[8:11], s35 offen")
    a(f"s_add_u32 s42, s35, {UT_OFF}")
    a("s_add_u32 m0, s41, 512")
    a("s_add_u32 s43, s35, 2")
    tu = None
    for z in range(4):
        tu = a.vm(f"buffer_load_dwordx4 v3, s[24:27], s42 offen offset:{1024*z} lds")
    a("s_add_u32 s44, s35, 4")
    a("s_add_u32 s45, s35, 6")
    so = ["s35", "s43", "s44", "s45"]
    tkq = []
    for z in range(4):
        for r in range(4):
            a(f"s_add_u32 m0, s40, {r*KC_STRIDE+32}")
            a("s_nop 0")
            t = a.vm(f"buffer_load_dwordx4 v3, s[8:11], {so[r]} offen offset:{1024*z} lds")
        tkq.append(t)
    a("s_lshl_b32 s46, s36, 12")
    a(f"s_add_u32 m0, s46, {K1_ST}")
    a(f"s_add_u32 s46, s46, {ST_OFF}")
    for z in range(4):
        tst = a.vm(f"buffer_load_dwordx4 v3, s[24:27], s46 offen offset:{1024*z} lds")
    a("v_and_b32 v5, 15, v2")
    a("v_lshrrev_b32 v6, 4, v2")
    a("v_lshlrev_b32 v7, 5, v5")
    a("v_lshl_add_u32 v7, v6, 3, v7")
    a(f"s_add_u32 s47, s35, {XT_OFF}")
    XR = 16
    tx = [a.vm(f"buffer_load_dwordx2 v[{XR+2*t}:{XR+2*t+1}], v7, s[24:27], s47 offen offset:{512*t}") for t in range(8)]
    a(f"s_add_u32 s48, s35, {HT_OFF}")
    a("v_mov_b32 v12, 0\nv_mov_b32 v13, 0\nv_mov_b32 v14, 0\nv_mov_b32 v15, 0")
    a("v_and_b32 v8, 31, v2")
    a("v_lshl_add_u32 v8, v8, 4, s41")
    a.lg("ds_write_b128 v8, v[12:15]")
    a("v_add_u32 v9, 1, v5")
    a("v_and_b32 v9, 3, v9")
    a("v_lshlrev_b32 v32, 3, v6")
    a("v_sub_u32 v32, v5, v32")
    a("v_sub_u32 v32, v32, v9")
    a("v_add_u32 v32, 25, v32")
    a("v_lshlrev_b32 v32, 1, v32")
    a(f"v_mul_u32_u24 v9, {KC_STRIDE}, v9")
    a("v_add3_u32 v32, v32, v9, s40")
    a("v_lshlrev_b32 v33, 5, v5")
    a("v_lshl_add_u32 v33, v6, 4, v33")
    a("v_add3_u32 v33, v33, s41, 32")
    a("v_lshrrev_b32 v9, 1, v6")
    a("v_lshlrev_b32 v34, 5, v5")
    a("v_lshl_add_u32 v34, v9, 4, v34")
    a("v_and_b32 v9, 1, v6")
    a("v_xor_b32 v9, 1, v9")
    a("v_lshl_add_u32 v34, v9, 3, v34")
    a("v_add_u32 v34, s41, v34")
    a(f"v_lshlrev_b32 v35, 2, v7")
    a(f"v_add_u32 v35, {K1_ST}, v35")
    a("v_lshrrev_b32 v36, 2, v5")
    a("v_and_b32 v37, 3, v5")
    a("v_lshlrev_b32 v38, 4, v36")
    a("v_sub_u32 v38, 64, v38")
    a(f"v_mul_u32_u24 v39, {KC_STRIDE}, v36")
    a("v_lshl_add_u32 v39, v37, 3, v39")
    a("v_add_u32 v39, s40, v39")
    a("v_cmp_eq_u32 vcc, 3, v37")
    a("v_cmp_ne_u32 s[50:51], 0, v36")
    a("s_and_b64 vcc, vcc, s[50:51]")
    stamp(a, 2)
    a.wait(th)
    stamp(a, 3)
    a("v_lshlrev_b64 v[10:11], v38, v[10:11]")
    a("s_nop 0")
    a("v_cndmask_b32 v10, 0, v10, vcc")
    a("v_cndmask_b32 v11, 0, v11, vcc")
    a.lg("ds_write_b64 v39, v[10:11]")
    a("s_waitcnt lgkmcnt(0)"); a.lg_done = a.lg_issued
    a("s_and_b32 s37, s37, 2")
    a("s_lshl_b32 s37, s37, 3")
    a("s_lshr_b32 s39, s39, s37")
    a("s_lshl_b32 s39, s39, 16")
    a("s_mov_b32 s49, 0xffff0000")
    ACC = 40
    AR = 72
    NR = 8
    EP = 104
    atok = {}; btok = {}
    def load_a(c):
        if c % 16 == 0: a.wait(tkq[c // 16])
        r = AR + 4 * (c % NR)
        a.lg(f"ds_read_b64 v[{r}:{r+1}], v32 offset:{64*c}")
        atok[c] = a.lg(f"ds_read_b64 v[{r+2}:{r+3}], v32 offset:{64*c+8}")
    def breg(j, rho): return 4 * (8 * rho + j)
    def load_b(j, rho):
        r = breg(j, rho)
        btok[(j, rho)] = a.lg(f"ds_read_b128 a[{r}:{r+3}], v33 offset:{512*j+64*(7-rho)}")
    def ep_pieces(t):
        e = EP + (t % 2) * 24
        KV, STA, T0, O = e, e + 4, e + 12, e + 20
        toks = {}
        def p0():
            if t == 0:
                a.wait(tst); a("s_barrier")
            toks["kv"] = a.lg(f"ds_read_b64 v[{KV}:{KV+1}], v34 offset:{512+512*t}")
            a.lg(f"ds_read_b128 v[{STA}:{STA+3}], v35 offset:{2048*t}")
            toks["st"] = a.lg(f"ds_read_b128 v[{STA+4}:{STA+7}], v35 offset:{2048*t+16}")
        ps = [p0]
        acc = ACC + 4 * t
        x = XR + 2 * t
        def mk(s, w=None):
            def f():
                if w: a.wait(*[toks[k] if isinstance(k, str) else k for k in w])
                a(s)
            return f
        ps.append(mk(f"v_and_b32 v{T0}, s49, v{KV+1}", ["kv"]))
        ps.append(mk(f"v_lshlrev_b32 v{T0+1}, 16, v{KV+1}"))
        ps.append(mk(f"v_and_b32 v{T0+2}, s49, v{KV}"))
        ps.append(mk(f"v_lshlrev_b32 v{T0+3}, 16, v{KV}"))
        for r in range(4):
            ps.append(mk(f"v_fma_f32 v{T0+r}, v{T0+r}, s39, v{acc+r}"))
        ps.append(mk(f"v_lshlrev_b32 v{T0+4}, 16, v{x}", [tx[t]]))
        ps.append(mk(f"v_and_b32 v{T0+5}, s49, v{x}"))
        ps.append(mk(f"v_lshlrev_b32 v{T0+6}, 16, v{x+1}"))
        ps.append(mk(f"v_and_b32 v{T0+7}, s49, v{x+1}"))
        for r in range(4):
            ps.append(mk(f"v_fmac_f32 v{STA+2*r+1}, v{T0+4+r}, v{STA+2*r}", ["st"]))
        for r in range(4):
            ps.append(mk(f"v_fmac_f32 v{T0+4+r}, v{STA+2*r+1}, v{T0+r}"))
        ps.append(mk(f"v_cvt_pk_bf16_f32 v{O}, v{T0+4}, v{T0+5}"))
        ps.append(mk(f"v_cvt_pk_bf16_f32 v{O+1}, v{T0+6}, v{T0+7}"))
        def st(): a.vm(f"buffer_store_dwordx2 v[{O}:{O+1}], v7, s[24:27], s48 offen offset:{512*t}")
        ps.append(st)
        return ps
    a.wait(tu)
    PF = 5
    load_a(0)
    stamp(a, 4)
    for j in range(8): load_b(j, 0)
    load_a(1)
    pend = []
    nm = 0
    nexta = 2
    for c in range(64):
        i, rho = c // 8, c % 8
        for t in range(i, 8):
            j = t - i
            a.wait(atok[c], btok[(j, rho)])
            ra = AR + 4 * (c % NR); rb = breg(j, rho); acc = ACC + 4 * t
            src = "0" if c == 0 else f"v[{acc}:{acc+3}]"
            a(f"v_mfma_f32_16x16x32_bf16 v[{acc}:{acc+3}], v[{ra}:{ra+3}], a[{rb}:{rb+3}], {src}")
            nm += 1
            slots = 2
            if i == 0 and rho < 7:
                load_b(j, rho + 1); slots -= 1
            if nexta < 64 and nexta <= c + (2 if i == 0 else PF) and nexta - c < NR - 1 and (t == i or i > 0):
                load_a(nexta); nexta += 1; slots -= 2
            while slots > 0 and pend and pend[0][0] <= nm:
                pend.pop(0)[1](); slots -= 1
            if rho == 7 and t == i:
                ps = ep_pieces(t)
                pend.append((nm, ps[0]))
                pend += [(nm + 5, p) for p in ps[1:]]
    stamp(a, 5)
    a("s_nop 7")
    for _, p in pend: p()
    stamp(a, 6)
    stamp_flush(a, 1, 7)
    a("s_endpgm")
    a("K1_help:")
    a.vm_issued = a.vm_done = a.lg_issued = a.lg_done = 0
    a("s_sub_u32 s34, s2, 144")
    a("s_mul_hi_u32 s35, s34, 0x55555556")
    a("s_mul_i32 s37, s35, 3")
    a("s_sub_u32 s37, s34, s37")
    a("s_waitcnt lgkmcnt(0)")
    a("s_cmp_ge_u32 s35, 18")
    a("s_cselect_b32 s8, s30, s28")
    a("s_cselect_b32 s9, s31, s29")
    a("s_cselect_b32 s38, 18, 0")
    a(f"s_mov_b32 s10, {D*F*2}")
    a("s_mov_b32 s11, 0x00020000")
    srd(a, 24, 32, 33, WS_BYTES)
    a("s_sub_u32 s38, s35, s38")
    a("v_lshrrev_b32 v3, 5, v0")
    a("v_and_b32 v4, 31, v0")
    a(f"s_mov_b32 s39, {24*F*2}")
    a("v_mul_lo_u32 v5, v3, s39")
    a("v_lshl_add_u32 v5, v4, 4, v5")
    a(f"s_mul_i32 s40, s37, {192*F*2}")
    a("s_lshl_b32 s41, s38, 9")
    a("s_add_u32 s40, s40, s41")
    L = 16
    tl = []
    for i in range(24):
        tl.append(a.vm(f"buffer_load_dwordx4 v[{L+4*i}:{L+4*i+3}], v5, s[8:11], s40 offen"))
        a(f"s_add_u32 s40, s40, {F*2}")
    a("s_mov_b32 s49, 0xffff0000")
    for e in range(8): a(f"v_mov_b32 v{8+e}, 0")
    for i in range(24):
        a.wait(tl[i])
        for w in range(4):
            r = L + 4 * i + w
            a(f"v_lshlrev_b32 v6, 16, v{r}")
            a(f"v_and_b32 v7, s49, v{r}")
            a(f"v_add_f32 v{8+2*w}, v{8+2*w}, v6")
            a(f"v_add_f32 v{9+2*w}, v{9+2*w}, v7")
    a("v_lshlrev_b32 v6, 5, v0")
    a.lg("ds_write_b128 v6, v[8:11]")
    a.lg("ds_write_b128 v6, v[12:15] offset:16")
    a.wait_all(vm=False)
    a("s_barrier")
    a("v_lshlrev_b32 v6, 2, v0")
    tt = [a.lg(f"ds_read_b32 v{8+e}, v6 offset:{1024*e}") for e in range(8)]
    a.wait(tt[7])
    for e in range(1, 8): a(f"v_add_f32 v8, v8, v{8+e}")
    a(f"s_mul_i32 s40, s37, {2*F*4}")
    a("s_lshl_b32 s41, s35, 10")
    a("s_add_u32 s40, s40, s41")
    a(f"s_add_u32 s40, s40, {CS_OFF}")
    a.vm("buffer_store_dword v8, v6, s[24:27], s40 offen")
    stamp_flush(a, 1, 7)
    a("K1_end:")
    a("s_endpgm")
    return a, dict(name="k1_kernel", grid=252, block=256, lds=K1_LDS, vgpr=512, accum=256)

SLOT = 24576
G1_CS = 6 * SLOT
G1_STX = G1_CS + 2560
G1_LDS = G1_STX + 1024
def g1():
    a = Asm()
    a("s_cmp_ge_u32 s2, 256")
    a("s_cbranch_scc1 G1_end")
    stamp_init(a)
    a("s_load_dwordx4 s[4:7], s[0:1], 56")
    a("s_load_dwordx2 s[32:33], s[0:1], 96")
    a("v_lshrrev_b32 v1, 6, v0")
    a("v_and_b32 v2, 63, v0")
    a("v_readfirstlane_b32 s36, v1")
    a("s_and_b32 s34, s2, 7")
    a("s_lshr_b32 s35, s2, 3")
    a("s_and_b32 s37, s35, 1")
    a("s_lshl_b32 s34, s34, 1")
    a("s_add_u32 s34, s34, s37")
    a("s_lshr_b32 s35, s35, 1")
    a("s_mul_i32 s38, s34, 288")
    a("s_and_b32 s38, s38, 0xffffffc0")
    a("s_lshl_b32 s39, s37, 6")
    a("s_add_u32 s39, s39, s38")
    a("s_cmp_eq_u32 s37, 0")
    a("s_cselect_b32 s40, 256, 0")
    a("s_add_u32 s40, s40, s38")
    a("s_and_b32 s41, s36, 1")
    a("s_lshr_b32 s42, s36, 1")
    a("v_lshrrev_b32 v3, 3, v2")
    a("v_mul_u32_u24 v3, 9216, v3")
    a("v_bfe_u32 v4, v2, 1, 2")
    a("v_bfe_u32 v5, v2, 4, 1")
    a("s_lshl_b32 s43, s42, 1")
    a("v_or_b32 v5, s43, v5")
    a("v_xor_b32 v4, v4, v5")
    a("v_lshl_add_u32 v3, v4, 5, v3")
    a("v_and_b32 v4, 1, v2")
    VW = 8
    a(f"v_lshl_add_u32 v{VW}, v4, 4, v3")
    a("v_lshrrev_b32 v3, 4, v2")
    a("v_bfe_u32 v4, v2, 2, 2")
    a("v_xor_b32 v4, v4, v3")
    a("v_lshlrev_b32 v3, 12, v3")
    a("v_lshl_add_u32 v3, v4, 6, v3")
    a("v_and_b32 v4, 3, v2")
    VX = 9
    a(f"v_lshl_add_u32 v{VX}, v4, 4, v3")
    a("s_mul_i32 s44, s36, 6144")
    a(f"s_mul_i32 s45, s41, {48*9216}")
    a("s_lshl_b32 s46, s39, 1")
    a("s_add_u32 s46, s46, s45")
    a("s_lshl_b32 s47, s40, 1")
    a("s_add_u32 s47, s47, s45")
    a(f"s_mul_i32 s48, s36, {24*4096}")
    a("s_lshl_b32 s49, s35, 8")
    a("s_add_u32 s48, s48, s49")
    a(f"s_add_u32 s48, s48, {HT_OFF}")
    a("s_waitcnt lgkmcnt(0)")
    stamp(a, 1)
    a("s_cmp_eq_u32 s42, 0")
    a("s_cselect_b32 s8, s4, s6")
    a("s_cselect_b32 s9, s5, s7")
    a(f"s_mov_b32 s10, {D*F*2}")
    a("s_mov_b32 s11, 0x00020000")
    srd(a, 24, 32, 33, WS_BYTES)
    loads = []
    for c in range(6): loads += [("X", 0, c), ("W", 0, c)]
    for g in range(1, 5):
        for c in range(6): loads.append(("W", g, c))
    ltok = {}
    def slot_of(kind, g, c): return loads.index((kind, g, c)) % 6
    def dma(n, i):
        kind, g, c = loads[n]
        sl = n % 6
        a(f"s_add_u32 m0, s44, {sl*SLOT + i*1024}")
        if kind == "X":
            a(f"s_add_u32 s50, s48, {(96*c + 4*i)*4096}")
            t = a.vm(f"buffer_load_dwordx4 v{VX}, s[24:27], s50 offen lds")
        else:
            base, off = ("s46", g * 128) if g < 4 else ("s47", 0)
            a(f"s_add_u32 s50, {base}, {(96*c + 8*i)*9216 + off}")
            t = a.vm(f"buffer_load_dwordx4 v{VW}, s[8:11], s50 offen lds")
        ltok[loads[n]] = t
    for n in range(2):
        for i in range(6): dma(n, i)
    a("v_cmp_le_u32 vcc, 80, v0")
    a("v_lshlrev_b32 v10, 4, v0")
    a(f"v_mov_b32 v3, {4608*4 - 80*16}")
    a("v_cndmask_b32 v3, 0, v3, vcc")
    a("v_add_u32 v3, v3, v10")
    a("v_cmp_le_u32 vcc, 160, v0")
    a("v_mov_b32 v4, 0x7ffffff0")
    a("s_lshl_b32 s51, s38, 2")
    a("v_cndmask_b32 v3, v3, v4, vcc")
    a(f"s_add_u32 s51, s51, {CS_OFF}")
    a(f"s_add_u32 s52, s51, {2*F*4}")
    a(f"s_add_u32 s53, s51, {4*F*4}")
    CT = 64
    tc = [a.vm(f"buffer_load_dwordx4 v[{CT+4*j}:{CT+4*j+3}], v3, s[24:27], s{51+j} offen") for j in range(3)]
    for n in range(2, 6):
        for i in range(6): dma(n, i)
    a("v_bfe_u32 v3, v2, 2, 2")
    a("v_and_b32 v4, 3, v2")
    a("v_bfe_u32 v5, v2, 4, 1")
    a("v_lshrrev_b32 v6, 5, v2")
    a("v_lshl_add_u32 v7, v6, 3, v3")
    a("v_mul_u32_u24 v11, 12288, v5")
    a("v_lshl_add_u32 v11, v7, 7, v11")
    a("v_and_b32 v12, 1, v4")
    a("v_lshl_add_u32 v11, v12, 4, v11")
    a("v_lshrrev_b32 v12, 1, v4")
    a("v_lshl_add_u32 v11, v12, 3, v11")
    a("v_lshrrev_b32 v12, 1, v3")
    a("v_lshl_or_b32 v12, v5, 1, v12")
    AA = 16
    a("s_lshl_b32 s54, s42, 1")
    a("s_add_u32 s55, s54, 1")
    a("s_lshl_b32 s56, s37, 1")
    a("s_add_u32 s56, s56, s42")
    for u in range(3):
        a(f"v_xor_b32 v13, s{54+u}, v12")
        a(f"v_lshl_add_u32 v{AA+3*u}, v13, 5, v11")
        a(f"v_add_u32 v{AA+3*u+1}, {2*SLOT}, v{AA+3*u}")
        a(f"v_add_u32 v{AA+3*u+2}, {4*SLOT}, v{AA+3*u}")
    a("v_lshlrev_b32 v11, 8, v7")
    a("v_lshl_add_u32 v11, v5, 5, v11")
    a("v_lshl_add_u32 v11, v4, 3, v11")
    XA = 25
    a("s_lshl_b32 s57, s41, 1")
    a("s_add_u32 s58, s57, 1")
    a("s_add_u32 s59, s57, s42")
    for t in range(3):
        a(f"v_xor_b32 v13, s{57+t}, v3")
        a(f"v_lshl_add_u32 v{XA+3*t}, v13, 6, v11")
        a(f"v_add_u32 v{XA+3*t+1}, {2*SLOT}, v{XA+3*t}")
        a(f"v_add_u32 v{XA+3*t+2}, {4*SLOT}, v{XA+3*t}")
    VH = 34
    a("v_mul_u32_u24 v11, 147456, v5")
    a("v_lshl_add_u32 v11, v6, 8, v11")
    a("v_and_b32 v12, 15, v2")
    a(f"v_lshl_add_u32 v{VH}, v12, 4, v11")
    a("s_lshl_b32 s60, s35, 3")
    a("s_lshl_b32 s61, s41, 2")
    a("s_add_u32 s60, s60, s61")
    a("s_mul_i32 s60, s60, 147456")
    a(f"s_add_u32 s60, s60, {HH_OFF}")
    a("s_lshl_b32 s61, s39, 5")
    a("s_add_u32 s61, s61, s60")
    a("s_lshl_b32 s62, s42, 10")
    a("s_add_u32 s61, s61, s62")
    a("s_lshl_b32 s62, s40, 5")
    a("s_add_u32 s62, s62, s60")
    a("s_lshl_b32 s63, s56, 9")
    a("s_add_u32 s62, s62, s63")
    VC = 35
    a("s_lshl_b32 s63, s37, 8")
    a("s_lshl_b32 s64, s42, 7")
    a("s_add_u32 s63, s63, s64")
    a(f"s_add_u32 s63, s63, {G1_CS}")
    a(f"v_lshl_add_u32 v{VC}, v6, 5, s63")
    a("s_sub_u32 s63, s40, s38")
    a("s_lshl_b32 s63, s63, 2")
    a("s_lshl_b32 s64, s56, 6")
    a("s_add_u32 s63, s63, s64")
    a(f"s_add_u32 s63, s63, {G1_CS}")
    a(f"v_lshl_add_u32 v{VC+1}, v6, 5, s63")
    a("v_and_b32 v12, 31, v2")
    a("s_lshl_b32 s63, s59, 8")
    a(f"s_add_u32 s63, s63, {G1_STX}")
    VSW = 37
    a(f"v_lshl_add_u32 v{VSW}, v12, 3, s63")
    a("s_lshl_b32 s63, s57, 8")
    a(f"s_add_u32 s63, s63, {G1_STX}")
    VSR = 38
    a(f"v_lshl_add_u32 v{VSR}, v12, 3, s63")
    a("s_lshl_b32 s63, s35, 9")
    a("s_lshl_b32 s64, s59, 7")
    a("s_add_u32 s63, s63, s64")
    a(f"s_add_u32 s63, s63, {R2_OFF}")
    a("s_cmp_eq_u32 s34, 0")
    a("s_cselect_b32 s63, s63, 0x7ff00000")
    VR2 = 39
    a(f"v_lshl_add_u32 v{VR2}, v12, 2, s63")
    a("s_mov_b32 s65, 0x3f803f80")
    SA = 40
    for i in range(4): a(f"v_mov_b32 v{SA+i}, 0")
    a.wait(tc[2])
    for j in range(4):
        a(f"v_add_f32 v{CT+j}, v{CT+j}, v{CT+4+j}")
        a(f"v_add_f32 v{CT+j}, v{CT+j}, v{CT+8+j}")
    a("v_cmp_gt_u32 vcc, 160, v0")
    a(f"v_add_u32 v10, {G1_CS}, v10")
    a("s_and_saveexec_b64 s[66:67], vcc")
    a.lg(f"ds_write_b128 v10, v[{CT}:{CT+3}]")
    a("s_mov_b64 exec, s[66:67]")
    NR = 6
    AR = 48
    STME = 72
    CSR = 72
    ET = 88
    XV = 96
    ACC = 128
    def xreg(ks, t):
        i = 2 * ks + t
        return ("a", 4 * i) if i < 64 else ("v", XV + 4 * (i - 64))
    frags = []
    for g in range(5):
        for c in range(6):
            for kl in range(6):
                for u in ((0, 1) if g < 4 else (2,)): frags.append((g, c, kl, u))
    NF = len(frags)
    stage_first = {}
    for n, f in enumerate(frags): stage_first.setdefault((f[0], f[1]), n)
    stages = sorted(stage_first)
    fill = []
    def add(at, fn): fill.append((at, len(fill), fn))
    ftok = {}; xtok = {}
    def mk_aread(n, h):
        g, c, kl, u = frags[n]
        sl = slot_of("W", g, c)
        r = AR + 4 * (n % NR) + 2 * h
        def f():
            if "noread" in ABL and g > 0:
                ftok[n] = None; return
            ftok[n] = a.lg(f"ds_read_b64_tr_b16 v[{r}:{r+1}], v{AA+3*u+sl//2} offset:{(sl%2)*SLOT + kl*2048 + h*512}")
        return f
    def mk_xread(c, kl, t, h):
        sl = slot_of("X", 0, c)
        f_, r = xreg(6 * c + kl, t); r += 2 * h
        def f():
            xtok[(6*c+kl, t)] = a.lg(f"ds_read_b64_tr_b16 {f_}[{r}:{r+1}], v{XA+3*t+sl//2} offset:{(sl%2)*SLOT + kl*4096 + h*1024}")
        return f
    stok = {}
    def mk_sread(c, kl, h):
        sl = slot_of("X", 0, c)
        r = STME + 4 * (kl % 2) + 2 * h
        def f():
            stok[(c, kl)] = a.lg(f"ds_read_b64_tr_b16 v[{r}:{r+1}], v{XA+6+sl//2} offset:{(sl%2)*SLOT + kl*4096 + h*1024}")
        return f
    def mk_dot(c, kl, j):
        r = STME + 4 * (kl % 2) + j
        def f():
            a.wait(stok[(c, kl)])
            a(f"v_dot2c_f32_bf16 v{SA + j%2}, s65, v{r}")
            a(f"v_dot2c_f32_bf16 v{SA + 2 + j%2}, v{r}, v{r}")
        return f
    bar_at = {}
    for si, st in enumerate(stages):
        n0 = stage_first[st]
        bar_at[st] = 2 * (n0 - 2) - 1 if n0 > 0 else -10
    for n in range(NF):
        st = frags[n][:2]
        for h in range(2):
            at = max(2 * (n - 3) + h, bar_at[st] + 0.1 + 0.01 * (2 * (n - stage_first[st]) + h) + (0.5 * (2 * (n - stage_first[st]) + h) if bar_at[st] > 0 else 0))
            add(at, mk_aread(n, h))
    for c in range(6):
        b = bar_at[(0, c)]
        for kl in range(6):
            m0_ = 24 * c + 4 * kl
            for t in range(2):
                for h in range(2):
                    at = max(m0_ - 8 + 2 * t + h, b + 0.2 + (0.5 * (4 * kl + 2 * t + h) if b > 0 else 0))
                    add(at, mk_xread(c, kl, t, h))
            for h in range(2):
                add(max(m0_ - 5 + h, b + 2.3 + h + 3 * kl), mk_sread(c, kl, h))
            for j in range(4):
                add(max(m0_ - 2 + j, b + 5.3 + j + 3 * kl) + 0.05, mk_dot(c, kl, j))
    nload = 6
    for si in range(1, len(stages)):
        st = stages[si]; prev = stages[si - 1]
        def mk_bar(st=st):
            def f():
                toks = [ltok[("W",) + st]]
                a.lg_done = a.lg_issued
                v = max(t.idx for t in toks)
                if v > a.vm_done:
                    a(f"s_waitcnt vmcnt({a.vm_issued - v}) lgkmcnt(0)"); a.vm_done = v
                else: a("s_waitcnt lgkmcnt(0)")
                if not ("nobar" in ABL and st[0] > 0): a("s_barrier")
            return f
        add(bar_at[st], mk_bar())
        nfree = 2 if prev[0] == 0 else 1
        span = (24 if st[0] < 4 else 12) - 4
        k = 0
        for _ in range(nfree):
            if nload < len(loads):
                for i in range(6):
                    if "nodma" in ABL and nload >= 12: ltok[loads[nload]] = Tok("vm", 0)
                    else: add(bar_at[st] + 3.4 + k * span / (6 * nfree), (lambda n=nload, i=i: dma(n, i)))
                    k += 1
                nload += 1
    b10 = 144
    fin = []
    M0, T1 = 44, ET
    fin.append(f"v_add_f32 v{SA}, v{SA}, v{SA+1}")
    fin.append(f"v_add_f32 v{SA+2}, v{SA+2}, v{SA+3}")
    fin.append(f"v_mov_b32 v{SA+1}, v{SA}")
    fin.append(f"v_mov_b32 v{SA+3}, v{SA+2}")
    fin.append(f"s_nop 1\nv_permlane32_swap_b32 v{SA}, v{SA+1}")
    fin.append(f"v_permlane32_swap_b32 v{SA+2}, v{SA+3}")
    fin.append(f"s_nop 1\nv_add_f32 v{SA}, v{SA}, v{SA+1}")
    fin.append(f"v_add_f32 v{SA+2}, v{SA+2}, v{SA+3}")
    fin.append(f"v_mul_f32 v{SA}, {-1.0/576!r}, v{SA}")
    fin.append(f"v_mul_f32 v{SA+2}, {1.0/576!r}, v{SA+2}")
    fin.append(f"v_fma_f32 v{SA+2}, -v{SA}, v{SA}, v{SA+2}")
    fin.append(f"v_max_f32 v{SA+2}, 0, v{SA+2}")
    fin.append(f"v_add_f32 v{SA+2}, 0x3727c5ac, v{SA+2}")
    fin.append(f"v_rcp_f32 v{SA+1}, v{SA+2}")
    for i, s_ in enumerate(fin): add(b10 + 3 + 0.5 * i, (lambda s_=s_: a(s_)))
    def st_write():
        a.lg(f"ds_write_b64 v{VSW}, v[{SA}:{SA+1}]")
        a.vm(f"buffer_store_dword v{SA+1}, v{VR2}, s[24:27], 0 offen")
    add(b10 + 12, st_write)
    sttok = {}
    def st_read():
        a.lg(f"ds_read_b64 v[{M0}:{M0+1}], v{VSR}")
        sttok[0] = a.lg(f"ds_read_b64 v[{M0+2}:{M0+3}], v{VSR} offset:256")
    add(bar_at[(1, 1)] + 2.2, st_read)
    def acc_of(g, u, t): return ACC + 64 * (g % 2) + 32 * (u % 2) + 16 * t
    def ep_items(g):
        items = []
        for u in ((0, 1) if g < 4 else (2,)):
            ctok = {}
            def rd(j, u=u, ctok=ctok):
                def f():
                    base = VC if g < 4 else VC + 1
                    off = (g * 256 + u * 64 if g < 4 else 0) + (j // 2) * 1280 + (j % 2) * 16
                    ctok[j] = a.lg(f"ds_read_b128 v[{CSR+4*j}:{CSR+4*j+3}], v{base} offset:{off}")
                return f
            for j in range(4): items.append(rd(j))
            for t in range(2):
                acc = acc_of(g, u, t)
                o = ET + 4 * t
                def mk(s_, w=None, ctok=ctok):
                    def f():
                        if w is not None: a.wait(ctok[w], sttok[0])
                        a(s_)
                    return f
                for e in range(8):
                    items.append(mk(f"v_fmac_f32 v{acc+e}, v{M0+2*t}, v{CSR+e}", 1))
                    items.append(mk(f"v_fmac_f32 v{acc+8+e}, v{M0+2*t}, v{CSR+8+e}", 3))
                for e in range(8):
                    items.append(mk(f"v_max_f32 v{acc+e}, 0, v{acc+e}"))
                for e in range(8):
                    items.append(mk(f"v_mul_f32 v{acc+e}, v{acc+e}, v{acc+8+e}"))
                for e in range(4):
                    items.append(mk(f"v_cvt_pk_bf16_f32 v{o+e}, v{acc+2*e}, v{acc+2*e+1}"))
                def st(u=u, t=t, o=o):
                    if g < 4: a(f"s_add_u32 s50, s61, {g*2048 + u*512 + t*294912}")
                    else: a(f"s_add_u32 s50, s62, {t*294912}")
                    a.vm(f"buffer_store_dwordx4 v[{o}:{o+3}], v{VH}, s[24:27], s50 offen")
                items.append(st)
        return items
    for g in range(4):
        items = ep_items(g)
        start = 144 * (g + 1) + (6 if g > 0 else 30)
        end = 144 * (g + 1) + (136 if g < 3 else 68)
        if "noep" in ABL: continue
        for i, it in enumerate(items): add(start + i * (end - start) / len(items) + 0.3, it)
    fill.sort(key=lambda x: (x[0], x[1]))
    a.wait(ltok[("W", 0, 0)])
    a("s_waitcnt lgkmcnt(0)"); a.lg_done = a.lg_issued
    a("s_barrier")
    stamp(a, 2)
    fi = 0
    while fi < len(fill) and fill[fi][0] < 0:
        fill[fi][2](); fi += 1
    m = 0
    for n, (g, c, kl, u) in enumerate(frags):
        ks = 6 * c + kl
        for t in range(2):
            a.wait(ftok[n], xtok[(ks, t)])
            ra = AR + 4 * (n % NR); xf, xr = xreg(ks, t); acc = acc_of(g, u, t)
            src = "0" if ks == 0 else f"v[{acc}:{acc+15}]"
            a(f"v_mfma_f32_32x32x16_bf16 v[{acc}:{acc+15}], v[{ra}:{ra+3}], {xf}[{xr}:{xr+3}], {src}")
            while fi < len(fill) and fill[fi][0] < m + 1:
                fill[fi][2](); fi += 1
            m += 1
            if m == 144: stamp(a, 3)
            if m == 288: stamp(a, 4)
    assert fi == len(fill), (fi, len(fill))
    stamp(a, 5)
    items = ep_items(4)
    for it in items[:4]: it()
    a("s_nop 7")
    for it in items[4:]: it()
    stamp(a, 6)
    stamp_flush(a, 2, 7, vt=(48, 49, 50, 51, 52, 53, 54, 55, 56))
    a("G1_end:")
    a("s_endpgm")
    return a, dict(name="g1_kernel", grid=256, block=256, lds=G1_LDS, vgpr=512, accum=256)

HEADER = open("cdna_kernels/" + NAME + ".s.ref").read().split("; Override launch")[0] if False else ""

def build(kernels, fn):
    out = []
    for a, m in kernels:
        out.append(f"; @launch kernel={m['name']} grid=({m['grid']},1,1) block=({m['block']},1,1) lds={m['lds']}")
    out.append('.amdgcn_target "amdgcn-amd-amdhsa--gfx950"\n.text')
    seen = set()
    for a, m in kernels:
        if m["name"] in seen: continue
        seen.add(m["name"])
        errs = check_hazards(a.lines, m["name"])
        for e in errs: print("HAZARD", e)
        out.append(kernel_header(m["name"]) + a.text())
    out.append('.section .rodata,"a"')
    seen = set()
    for a, m in kernels:
        if m["name"] in seen: continue
        seen.add(m["name"])
        out.append(kernel_desc(m["name"], m["vgpr"], 102, m.get("accum")))
    open(fn, "w").write("\n".join(out))

if __name__ == "__main__":
    build([k0(), k1(), g1()], "a.s")
    STAMPS = True
    build([k0(), k1(), g1()], "a_st.s")
    STAMP_INS = "s_memtime"
    for abl in ["", "nodma", "nobar", "noep", "noread", "nodma,noep", "nodma,noep,nobar", "nodma,noep,nobar,noread"]:
        ABL = set(abl.split(","))
        build([k0(), k1(), g1()], "abl_" + abl.replace(",", "_") + ".s")
```

```python
import sys
sys.path.insert(0, "work")
from gen import *
from g2a import g2
def nop():
    a = Asm()
    a("s_endpgm")
    return a, dict(name="nop_kernel", grid=256, block=256, lds=0, vgpr=8)
build([k0(), k1(), g1(), g2(), nop(), nop(), nop(), nop()], "b_nop4.s")
build([k0(), k1(), g1(), g2(), g2()], "b_g2x2.s")
build([k0(), k1(), g1(), g1(), g2()], "b_g1x2.s")
build([k0(), k0(), k1(), k1(), g1(), g2()], "b_k01x2.s")
```

```python
import sys
sys.path.insert(0, "work2")
from fw import *
from asmlib import *

S, D, F = 2048, 576, 4608
UT_OFF = 0x0000000
XT_OFF = 0x0240000
HT_OFF = 0x0480000
ST_OFF = 0x06C0000
CS_OFF = 0x06C8000
FL_OFF = 0x0700000
FL0 = FL_OFF
FL1 = FL_OFF + 0x8000
FLA = FL_OFF + 0x10000
FLB = FL_OFF + 0x18000
FLX = FL_OFF + 0x20000
EP_OFF = FL_OFF + 0x60000
HH_OFF = 0x0800000
WD_OFF = 0x1A00000
PX_OFF = 0x2000000
PY_OFF = 0x2C00000
WS_BYTES = 268435456
SD_BYTES = S * D * 2
STAMP_OFF = 0x8000000

class Cfg:
    stamps = False
    stamp_ins = "s_memrealtime"
    stop = None
    fs0 = 4
    fs1 = 4
    abl = set()
C = Cfg

NST = 16
def stamp(a, i):
    if not C.stamps: return
    a(f"{C.stamp_ins} s[98:99]")
    a("s_waitcnt lgkmcnt(0)"); a.lg_done = a.lg_issued
    a(f"s_mov_b32 s{76+i}, s98")
def stamp_init(a):
    if not C.stamps: return
    for i in range(1, NST): a(f"s_mov_b32 s{76+i}, 0")
    stamp(a, 0)
def stamp_flush(a, last, vb):
    if not C.stamps: return
    a("s_waitcnt vmcnt(0)")
    stamp(a, last)
    a("s_mov_b64 exec, 1")
    for i in range(NST): a(f"v_mov_b32 v{vb+i}, s{76+i}")
    a("s_lshl_b32 s96, s2, 2")
    a("s_add_u32 s96, s96, s36")
    a("s_lshl_b32 s96, s96, 6")
    a(f"s_add_u32 s96, s96, {STAMP_OFF}")
    a(f"v_mov_b32 v{vb+16}, 0")
    for j in range(4):
        a(f"buffer_store_dwordx4 v[{vb+4*j}:{vb+4*j+3}], v{vb+16}, s[24:27], s96 offen offset:{16*j}")

def srd(a, d, lo, hi, size):
    a(f"s_mov_b32 s{d}, s{lo}")
    a(f"s_mov_b32 s{d+1}, s{hi}")
    a(f"s_mov_b32 s{d+2}, {size}")
    a(f"s_mov_b32 s{d+3}, 0x00020000")

_lab = [0]
def label(p="L"):
    _lab[0] += 1
    return f"{p}_{_lab[0]}"

SPIN = 40000
def poll(a, loads, scnt=97):
    L = label("POLL"); Dn = label("PDONE")
    a(f"s_mov_b32 s{scnt}, {SPIN}")
    a(f"{L}:")
    for vt, va, so, imm in loads:
        a(f"buffer_load_dword v{vt}, v{va}, s[24:27], {so} offen offset:{imm} sc1")
    a("s_waitcnt vmcnt(0)")
    for n, (vt, va, so, imm) in enumerate(loads):
        if n == 0: a(f"v_xor_b32 v{vt}, s3, v{vt}")
        else:
            a(f"v_xor_b32 v{vt}, s3, v{vt}")
            a(f"v_or_b32 v{loads[0][0]}, v{loads[0][0]}, v{vt}")
    a(f"v_cmp_ne_u32 vcc, 0, v{loads[0][0]}")
    a(f"s_cbranch_vccz {Dn}")
    a(f"s_sub_u32 s{scnt}, s{scnt}, 1")
    a(f"s_cbranch_scc0 {L}")
    a(f"{Dn}:")
    a.vm_done = a.vm_issued

def flag_store(a, vt, soff_reg):
    a("s_mov_b64 exec, 1")
    a(f"v_mov_b32 v{vt}, s3")
    a(f"v_mov_b32 v{vt+1}, 0")
    a.vm(f"buffer_store_dword v{vt}, v{vt+1}, s[24:27], s{soff_reg} offen sc1")
    a("s_mov_b64 exec, -1")

def build(a, m, fn):
    out = [f"; @launch grid=({m['grid']},1,1) block=({m['block']},1,1) lds={m['lds']}"]
    out.append('.amdgcn_target "amdgcn-amd-amdhsa--gfx950"\n.text')
    n = NAME + "_kernel"
    errs = check_hazards(a.lines, "k")
    for e in errs: print("HAZARD", e)
    out.append(kernel_header(n) + a.text())
    out.append('.section .rodata,"a"')
    out.append(kernel_desc(n, m["vgpr"], 102, m.get("accum")))
    open(fn, "w").write("\n".join(out))
```

```python
from common import *
from pa import *

G1_CS = 0
G1_STX = 2560
ACC = 8
XV = 136
VW = 168
AA = 171
VC = 180
MEAN = 182
DA = 186
VH8 = 189
VFL = 190
VT = 192
AR = 196
CSR = 228
ET = 244
VSP = 252
NR = 8
SM0, SWF, SWH = 40, 41, 42
SKQ, SCQ, SRB, SODD, SFL = 43, 44, 45, 46, 47
SX, SD_, SHS, SHH, SHL = 48, 49, 50, 62, 63
SFLH, SFLHO, STMP = 65, 66, 67
SSP, SP = 30, 31

def setup_early(a):
    a(f"s_lshr_b32 s{SKQ}, s28, 1")
    a(f"s_and_b32 s{SCQ}, s29, 3")
    a(f"s_and_b32 s{SRB}, s28, 1")
    a(f"s_lshl_b32 s{SRB}, s{SRB}, 3")
    a("s_lshr_b32 s73, s29, 2")
    a(f"s_add_u32 s{SRB}, s{SRB}, s73")
    a(f"s_and_b32 s{SODD}, s29, 1")
    a(f"s_lshl_b32 s73, s{SKQ}, 2")
    a(f"s_add_u32 s73, s73, s{SCQ}")
    a("s_mul_i32 s73, s73, 288")
    a(f"s_and_b32 s{SFL}, s73, 0xffffffc0")
    a("s_and_b32 s73, s36, 1")
    a(f"s_mul_i32 s73, s73, {48*9216}")
    a(f"s_lshl_b32 s74, s{SODD}, 6")
    a(f"s_add_u32 s74, s74, s{SFL}")
    a(f"s_lshl_b32 s{SWF}, s74, 1")
    a(f"s_add_u32 s{SWF}, s{SWF}, s73")
    a(f"s_cmp_eq_u32 s{SODD}, 0")
    a("s_cselect_b32 s74, 256, 0")
    a(f"s_add_u32 s74, s74, s{SFL}")
    a(f"s_lshl_b32 s{SWH}, s74, 1")
    a(f"s_add_u32 s{SWH}, s{SWH}, s73")
    a(f"s_mul_i32 s{SM0}, s36, 6144")
    a(f"s_add_u32 s{SM0}, s{SM0}, {RING}")
    a("s_cmp_lt_u32 s36, 2")
    a(f"s_cselect_b32 s8, s{PWG}, s{PWU}")
    a(f"s_cselect_b32 s9, s{PWG+1}, s{PWU+1}")
    a(f"s_mov_b32 s10, {D*F*2}")
    a("s_mov_b32 s11, 0x00020000")
    a(f"v_lshrrev_b32 v{VT}, 3, v2")
    a(f"v_mul_u32_u24 v{VT}, 9216, v{VT}")
    a(f"v_bfe_u32 v{VT+1}, v2, 1, 2")
    a(f"v_lshrrev_b32 v{VT+2}, 4, v2")
    a(f"v_xor_b32 v{VT+1}, v{VT+1}, v{VT+2}")
    a(f"v_lshl_add_u32 v{VT}, v{VT+1}, 5, v{VT}")
    a(f"v_and_b32 v{VT+1}, 1, v2")
    a(f"v_lshl_add_u32 v{VW}, v{VT+1}, 4, v{VT}")
    a(f"v_add_u32 v{VW+1}, {8*9216-1024}, v{VW}")
    a(f"v_add_u32 v{VW+2}, {2*(8*9216-1024)}, v{VW}")

def wdma(a, g, c, sl, n):
    b, u = n // 3, n % 3
    if u == 0:
        a(f"s_add_u32 m0, s{SM0}, {sl*SLOT + 3072*b}")
        base, off = (SWF, g * 128) if g < 4 else (SWH, 0)
        a(f"s_add_u32 s75, s{base}, {(96*c + 24*b)*9216 + off}")
    return a.vm(f"buffer_load_dwordx4 v{VW+u}, s[8:11], s75 offen offset:{1024*u} lds")

B1 = ACC + 64
VX = B1
XA = B1 + 2
VSW = B1 + 14
VSR = VSP
VCS = B1 + 15
VCW = B1 + 16
VP = B1 + 17
CT = B1 + 24
ONES = ET

def setup_late(a):
    a(f"s_and_b32 s{SSP}, s36, 1")
    a(f"s_lshr_b32 s{SP}, s36, 1")
    t0, t1, t2, t3 = VT, VT + 1, VT + 2, VT + 3
    a(f"v_lshrrev_b32 v{t0}, 4, v2")
    a(f"v_bfe_u32 v{t1}, v2, 1, 3")
    a(f"v_xor_b32 v{t1}, v{t1}, v{t0}")
    a(f"v_and_b32 v{t2}, 1, v2")
    a(f"v_lshlrev_b32 v{t2}, 4, v{t2}")
    a(f"v_lshl_add_u32 v{t2}, v{t0}, 12, v{t2}")
    a(f"v_lshl_add_u32 v{VX}, v{t1}, 5, v{t2}")
    a(f"v_xor_b32 v{t1}, 4, v{t1}")
    a(f"v_lshl_add_u32 v{VX+1}, v{t1}, 5, v{t2}")
    a(f"v_add_u32 v{VX+1}, {4*4096-1024}, v{VX+1}")
    a(f"s_mul_i32 s{SX}, s36, {24*4096}")
    a(f"s_lshl_b32 s73, s{SRB}, 8")
    a(f"s_add_u32 s{SX}, s{SX}, s73")
    a(f"s_add_u32 s{SX}, s{SX}, {HT_OFF}")
    a(f"v_mul_u32_u24 v{VP}, {C.fs1}, v2")
    a(f"v_min_u32 v{VP+1}, 15, v2")
    a(f"v_add_u32 v{VP+1}, 128, v{VP+1}")
    a(f"v_mul_u32_u24 v{VP+1}, {C.fs1}, v{VP+1}")
    a(f"v_add_u32 v{VP+2}, {64*C.fs1}, v{VP}")
    a(f"v_lshrrev_b32 v{t1}, 2, v2")
    a(f"v_and_b32 v{t2}, 3, v2")
    a(f"v_lshlrev_b32 v{t2}, 3, v{t2}")
    a(f"v_lshl_add_u32 v{t3}, v{t1}, 7, v{t2}")
    a(f"v_add_u32 v{t3}, {RING}, v{t3}")
    a(f"v_bfe_u32 v5, v2, 3, 2")
    a(f"s_lshl_b32 s70, s{SP}, 1")
    a("s_add_u32 s71, s70, 1")
    a(f"s_lshl_b32 s72, s{SODD}, 1")
    a(f"s_add_u32 s72, s72, s{SP}")
    for u in range(3):
        a(f"v_xor_b32 v6, s{70+u}, v5")
        a(f"v_lshl_add_u32 v{AA+3*u}, v6, 5, v{t3}")
        a(f"v_add_u32 v{AA+3*u+1}, {2*SLOT}, v{AA+3*u}")
        a(f"v_add_u32 v{AA+3*u+2}, {4*SLOT}, v{AA+3*u}")
    a(f"v_lshl_add_u32 v{t3}, v{t1}, 8, v{t2}")
    a(f"v_add_u32 v{t3}, {RING}, v{t3}")
    a(f"v_and_b32 v5, 7, v{t1}")
    a(f"s_lshl_b32 s73, s{SSP}, 2")
    a(f"s_add_u32 s73, s73, s70")
    for t in range(4):
        a(f"s_xor_b32 s74, s73, {t}")
        a(f"v_xor_b32 v6, s74, v5")
        a(f"v_lshl_add_u32 v{XA+3*t}, v6, 5, v{t3}")
        a(f"v_add_u32 v{XA+3*t+1}, {2*SLOT}, v{XA+3*t}")
        a(f"v_add_u32 v{XA+3*t+2}, {4*SLOT}, v{XA+3*t}")
        a(f"s_lshl_b32 s{SHS+t}, s{SRB}, 3")
        a(f"s_add_u32 s{SHS+t}, s{SHS+t}, s74")
        a(f"s_mul_i32 s{SHS+t}, s{SHS+t}, 147456")
    a(f"s_lshr_b32 s74, s{SFL}, 5")
    a(f"s_add_u32 s74, s74, s72")
    a("s_lshl_b32 s74, s74, 10")
    a(f"s_add_u32 s74, s74, {HH_OFF}")
    for t in range(4): a(f"s_add_u32 s{SHS+t}, s{SHS+t}, s74")
    a(f"s_cmp_eq_u32 s{SODD}, 0")
    a(f"s_cselect_b32 s{SHH}, 8, 1")
    a(f"s_sub_u32 s{SHH}, s{SHH}, s72")
    a(f"s_lshl_b32 s{SHH}, s{SHH}, 10")
    a(f"s_lshl_b32 s74, s{SP}, 3")
    a(f"v_add_u32 v{VH8}, s74, v3")
    a(f"s_lshl_b32 s74, s{SODD}, 8")
    a(f"s_lshl_b32 s75, s{SP}, 7")
    a("s_add_u32 s74, s74, s75")
    a(f"s_add_u32 s74, s74, {G1_CS}")
    a(f"v_lshl_add_u32 v{VC}, v{t0}, 4, s74")
    a(f"s_cmp_eq_u32 s{SODD}, 0")
    a("s_cselect_b32 s74, 1024, 0")
    a("s_lshl_b32 s75, s72, 6")
    a("s_add_u32 s74, s74, s75")
    a(f"s_add_u32 s74, s74, {G1_CS}")
    a(f"v_lshl_add_u32 v{VC+1}, v{t0}, 4, s74")
    a("v_cmp_le_u32 vcc, 80, v0")
    a(f"v_lshlrev_b32 v{VCW}, 4, v0")
    a(f"v_mov_b32 v5, {4608*4 - 80*16}")
    a("v_cndmask_b32 v5, 0, v5, vcc")
    a(f"v_add_u32 v5, v5, v{VCW}")
    a("v_cmp_le_u32 vcc, 160, v0")
    a("v_mov_b32 v6, 0x7ffffff0")
    a(f"v_mov_b32 v7, {G1_STX + 1024 + 1024}")
    a(f"v_cndmask_b32 v{VCS}, v5, v6, vcc")
    a(f"v_add_u32 v{VCW}, {G1_CS}, v{VCW}")
    a(f"v_cndmask_b32 v{VCW}, v{VCW}, v7, vcc")
    a("v_and_b32 v5, 15, v2")
    a("s_lshl_b32 s74, s73, 7")
    a(f"s_add_u32 s74, s74, {G1_STX}")
    a(f"v_lshl_add_u32 v6, v5, 3, s74")
    a("s_xor_b32 s74, s74, 256")
    a(f"v_lshl_add_u32 v{VSR}, v5, 3, s74")
    a("v_lshrrev_b32 v7, 2, v5")
    a(f"v_cmp_eq_u32 vcc, v7, v{t0}")
    a(f"v_lshlrev_b32 v7, 3, v2")
    a(f"v_add_u32 v7, {G1_STX + 1024}, v7")
    a(f"v_cndmask_b32 v{VSW}, v7, v6, vcc")
    a("v_and_b32 v7, 1, v2")
    a("v_cmp_ne_u32 s[32:33], 0, v7")
    a("v_and_b32 v7, 2, v2")
    a("v_cmp_ne_u32 s[34:35], 0, v7")
    for i in range(4): a(f"v_mov_b32 v{ONES+i}, 0x3f803f80")
    a(f"v_add_u32 v{DA}, {RING}, v3")
    a(f"v_add_u32 v{DA+1}, {RING + 2*SLOT}, v3")
    a(f"v_add_u32 v{DA+2}, {RING + 4*SLOT}, v3")
    a(f"s_lshl_b32 s74, s{SKQ}, 2")
    a(f"s_add_u32 s74, s74, s{SCQ}")
    a(f"s_mul_i32 s{SD_}, s74, {324*1024}")
    a("s_mul_i32 s75, s36, 6144")
    a(f"s_add_u32 s{SD_}, s{SD_}, s75")
    a(f"s_add_u32 s{SD_}, s{SD_}, {WD_OFF}")
    a(f"s_lshl_b32 s74, s{SRB}, 3")
    a("s_lshl_b32 s75, s36, 1")
    a("s_add_u32 s74, s74, s75")
    a("s_mul_i32 s74, s74, 144")
    a(f"s_mul_i32 s75, s{SKQ}, 36")
    a("s_add_u32 s74, s74, s75")
    a("s_lshl_b32 s74, s74, 10")
    a(f"s_add_u32 s{SHL}, s74, {HH_OFF}")
    a(f"s_add_u32 s{SHL+1}, s{SHL}, 147456")
    a(f"s_lshl_b32 s74, s{SRB}, 2")
    a(f"s_add_u32 s74, s74, s{SKQ}")
    a("s_lshl_b32 s74, s74, 6")
    a(f"s_add_u32 s{SFLH}, s74, {FLA}")
    a(f"s_lshl_b32 s74, s{SCQ}, 4")
    a(f"s_add_u32 s{SFLHO}, s{SFLH}, s74")
    a(f"v_lshlrev_b32 v{VFL}, 1, v{t2}")
    a(f"v_lshrrev_b32 v{VFL+1}, 1, v{t2}")

def xreg(i):
    return ("a", 4 * i) if i < 64 else ("v", XV + 4 * (i - 64))
def rr(f, r, n=4): return f"{f}[{r}:{r+n-1}]"

def kap_fb(kap):
    if kap < 32: g, i4, lo = kap // 8, (kap % 8) // 2, kap % 2; jp = 2 * g + lo
    else: i4, jp = kap - 32, 8
    j = (jp + 1) % 9 if i4 % 2 else jp
    return 9 * i4 + j

def ffn(a, slow):
    hi = []; lo = []
    def add(at, fn): hi.append((at, len(hi), fn))
    def addlo(at, fn): lo.append((at, fn))
    ltok = {}; slot = {("X", 0): 0, ("X", 1): 1, ("X", 2): 2, ("W", 2): 3, ("W", 0): 4, ("W", 1): 5}
    NULL = Tok("vm", 0)
    ltok[("W", 0)] = ltok[("W", 1)] = NULL
    def dma(ld, n):
        k, s = ld; sl = slot[ld]
        if k == "W": t = wdma(a, s // 6, s % 6, sl, n)
        elif k == "X":
            b, u = n // 2, n % 2
            if u == 0:
                a(f"s_add_u32 m0, s{SM0}, {sl*SLOT + 2048*b}")
                a(f"s_add_u32 s75, s{SX}, {(96*s + 8*b)*4096}")
            t = a.vm(f"buffer_load_dwordx4 v{VX+u}, s[24:27], s75 offen offset:{1024*u} sc1 lds")
        else:
            if s == 13:
                if n == 0:
                    a("s_mul_i32 s74, s36, 3072")
                    a(f"s_add_u32 m0, s74, {RING + sl*SLOT}")
                    a(f"s_sub_u32 s75, s{SD_}, s74")
                    a(f"s_add_u32 s75, s75, {s*SLOT}")
                t = a.vm(f"buffer_load_dwordx4 v3, s[24:27], s75 offen offset:{1024*n} sc1 lds")
            else:
                b, u = n // 3, n % 3
                if u == 0:
                    a(f"s_add_u32 m0, s{SM0}, {sl*SLOT + 3072*b}")
                    a(f"s_add_u32 s75, s{SD_}, {s*SLOT + 3072*b}")
                t = a.vm(f"buffer_load_dwordx4 v3, s[24:27], s75 offen offset:{1024*u} sc1 lds")
        ltok[ld] = t
    def ndma(ld): return 3 if ld == ("D", 13) else 6
    a("s_waitcnt vmcnt(0)")
    a.vm_issued = a.vm_done = 0
    a("s_barrier")
    stamp(a, 7)
    a("s_cmp_lg_u32 s36, 0")
    a("s_cbranch_scc1 F_j1")
    a(f"s_mul_i32 s74, s2, {C.fs1}")
    a(f"s_add_u32 s74, s74, {FL1}")
    flag_store(a, VT, 74)
    a("s_cmp_lg_u32 s2, 0")
    a("s_cbranch_scc1 F_j1")
    a(f"s_mov_b32 s74, {EP_OFF}")
    flag_store(a, VT, 74)
    a("F_j1:")
    a.vm_issued = a.vm_done = 0
    if C.stop == "p1": return
    for n in range(6): dma(("W", 2), n)
    a("s_cmp_lg_u32 s36, 0")
    a("s_cbranch_scc1 F_j2")
    a(f"s_mov_b32 s74, {FL1}")
    sv = a.vm_done
    poll(a, [(VP + 3, VP, "s74", 0), (VP + 4, VP + 2, "s74", 0), (VP + 5, VP + 1, "s74", 0)])
    a.vm_done = sv
    a("F_j2:")
    a("s_barrier")
    stamp(a, 8)
    for c in range(3):
        for n in range(6): dma(("X", c), n)
    mf = []
    frags = []
    Mg = {}; Mst = {}
    for g in range(5):
        Mg[g] = len(mf)
        for c in range(6):
            Mst[("W", 6 * g + c)] = len(mf)
            for kl in range(3):
                ks = 3 * c + kl
                tiles = [(0, 0), (0, 1), (1, 0), (1, 1)] if g < 4 else [(0, 2), (1, 2)]
                for ti, (mat, u) in enumerate(tiles):
                    n = len(frags)
                    frags.append((("W", 6 * g + c), mat * 12288 + kl * 4096, AA + 3 * u, "tr", len(mf)))
                    for t in range(4):
                        acc = ACC + 64 * (g % 2) + 16 * ti + 4 * t
                        mf.append((("v", acc), ("v", AR + 4 * (n % NR)), xreg(4 * ks + t), ks == 0, [("f", n), ("x", 4 * ks + t)]))
                if g == 0:
                    for t in range(2): mf.append((("v", CSR + 4 * t), ("v", ONES), xreg(4 * ks + t), ks == 0, []))
                    for t in range(2): mf.append((("v", CSR + 8 + 4 * t), xreg(4 * ks + t), xreg(4 * ks + t), ks == 0, []))
    M5 = len(mf)
    def hreg(h): return xreg(h) if h < 58 else ("v", B1 + 4 * (h - 58))
    nd = 0
    if C.stop != "g1":
        for kap in range(36):
            for z in range(7):
                n = len(frags)
                if nd % 24 == 0: Mst[("D", nd // 24)] = len(mf)
                frags.append((("D", nd // 24), (nd % 24) * 1024, DA, "lin", len(mf))); nd += 1
                for st in range(2):
                    mf.append((xreg(58 + 2 * z + st), ("v", AR + 4 * (n % NR)), hreg(2 * kap + st), kap == 0, [("f", n), ("h", 2 * kap + st)]))
        M6 = len(mf)
        A2 = ACC + 32
        for k2 in range(36):
            kap = (k2 + 29) % 36
            for ab in range(2):
                n = len(frags)
                if nd % 24 == 0: Mst[("D", nd // 24)] = len(mf)
                frags.append((("D", nd // 24), (nd % 24) * 1024, DA, "lin", len(mf))); nd += 1
                for st in range(2):
                    mf.append((("v", A2 + 8 * st + 4 * ab), ("v", AR + 4 * (n % NR)), hreg(2 * kap + st), k2 == 0, [("f", n)]))
    NM = len(mf)
    tok = {}
    lastread = {}
    W = lambda s: ("W", s); X = lambda s: ("X", s)
    bars = [(-100, [X(0), W(0), W(1), W(2)], []), (12, [X(1)], [X(0)]), (36, [X(2)], [X(1)]), (64, [], [X(2), W(0)]),
            (100, [X(3)], []), (124, [W(3)], [X(3), W(1)]), (160, [X(4), W(4)], []), (184, [], [X(4), W(2)]),
            (220, [X(5), W(5)], []), (244, [], [X(5), W(3)])]
    seq = [W(s) for s in range(30)] + ([("D", s) for s in range(14)] if C.stop != "g1" else [])
    for i in range(6, len(seq)):
        bars.append((Mst[seq[i]] - 18, [seq[i]], [seq[i - 2]]))
    queue = [X(3), W(3), X(4), W(4), X(5), W(5)] + seq[6:]
    opened = {}
    extra_wait = {}
    post = {}
    for bi, (pos, opens, frees) in enumerate(bars):
        for o in opens: opened[o] = pos
        def mk(bi=bi, opens=opens, frees=frees):
            def f():
                toks = [ltok[o] for o in opens] + [lastread[x] for x in frees] + [fn() for fn in extra_wait.get(bi, [])]
                a.wait(*toks)
                a("s_barrier")
                if bi in post: post[bi]()
            return f
        add(pos, mk())
        nxt = bars[bi + 1][0] if bi + 1 < len(bars) else pos + 40
        todo = []
        for fr in frees:
            if queue:
                ld = queue.pop(0); slot[ld] = slot[fr]
                todo += [(ld, n) for n in range(ndma(ld))]
        span = min(nxt - pos - 2, 42)
        for k, (ld, n) in enumerate(todo):
            add(pos + 1.5 + k * span / len(todo), (lambda ld=ld, n=n: dma(ld, n)))
    assert not queue
    def bar_after(p):
        for bi, b in enumerate(bars):
            if b[0] >= p: return bi
    for n, (ld, off, areg, kind, m0_) in enumerate(frags):
        r = AR + 4 * (n % NR)
        la = 4 if kind == "tr" else 6
        at = frags[n - la][4] if n >= la else -50 + n
        if n >= NR: at = max(at, frags[n - NR + 1][4])
        at = max(at, opened[ld] + 0.1)
        def mk(n=n, ld=ld, off=off, areg=areg, kind=kind, r=r, h=0):
            def f():
                sl = slot[ld]
                o = (sl % 2) * SLOT + off
                if kind == "tr": t = a.lg(f"ds_read_b64_tr_b16 v[{r+2*h}:{r+2*h+1}], v{areg + sl//2} offset:{o + 2048*h}")
                else: t = a.lg(f"ds_read_b128 v[{r}:{r+3}], v{areg + sl//2} offset:{o}")
                tok[("f", n)] = t; lastread[ld] = t
            return f
        add(at + 0.2, mk())
        if kind == "tr": add(at + (1.2 if at >= 0 else 0.3), mk(h=1))
    for c in range(6):
        k = 0
        for kl in range(3):
            for t in range(4):
                for h in range(2):
                    i = 4 * (3 * c + kl) + t
                    def mk(c=c, kl=kl, t=t, h=h, i=i):
                        def f():
                            sl = slot[X(c)]
                            f_, r = xreg(i)
                            tk = a.lg(f"ds_read_b64_tr_b16 {f_}[{r+2*h}:{r+2*h+1}], v{XA + 3*t + sl//2} offset:{(sl%2)*SLOT + kl*8192 + 4096*h}")
                            tok[("x", i)] = tk; lastread[X(c)] = tk
                        return f
                    if c == 0: at = -60 + k if k < 8 else (k - 8) * 0.6
                    else: at = opened[X(c)] + 0.5 + k * 0.8
                    add(at, mk()); k += 1
    def check(loads, tk):
        S_ = label("SLOW"); B_ = label("BACK")
        a.wait(tk)
        if len(loads) == 1:
            a(f"v_cmp_ne_u32 vcc, s3, v{loads[0][0]}")
        else:
            for vt, *_ in loads: a(f"v_xor_b32 v{vt}, s3, v{vt}")
            a(f"v_or_b32 v{loads[0][0]}, v{loads[0][0]}, v{loads[1][0]}")
            a(f"v_cmp_ne_u32 vcc, 0, v{loads[0][0]}")
        a(f"s_cbranch_vccnz {S_}")
        a(f"{B_}:")
        slow(f"{S_}:")
        poll(slow, loads)
        slow(f"s_branch {B_}")
    def flagload(loads, key):
        def f():
            for vt, va, so, imm in loads:
                tok[key] = a.vm(f"buffer_load_dword v{vt}, v{va}, s[24:27], {so} offen offset:{imm} sc1")
        return f
    hl = [(VP + 3, VP, "s68", 0), (VP + 4, VP, "s69", 0)]
    def hl_set():
        a(f"s_mov_b32 s68, {FL1 + 144*C.fs1}")
        a(f"s_mov_b32 s69, {FL1 + 192*C.fs1}")
    add(104, hl_set); add(105, flagload(hl, "hl"))
    add(200, lambda: check(hl, tok["hl"]))
    for j in range(3):
        def f(j=j):
            if j == 0: a(f"s_lshl_b32 s74, s{SFL}, 2")
            a(f"s_add_u32 s74, s74, {CS_OFF if j == 0 else 2*F*4}")
            tok["cs"] = a.vm(f"buffer_load_dwordx4 v[{CT+4*j}:{CT+4*j+3}], v{VCS}, s[24:27], s74 offen sc1")
        add(202.6 + 0.01 * j, f)
    for j in range(4):
        def f(j=j):
            a.wait(tok["cs"])
            a(f"v_add_f32 v{CT+j}, v{CT+j}, v{CT+4+j}")
            a(f"v_add_f32 v{CT+j}, v{CT+j}, v{CT+8+j}")
        add(300.6 + 2 * j, f)
    def f(): tok["csw"] = a.lg(f"ds_write_b128 v{VCW}, v[{CT}:{CT+3}]")
    add(310.6, f)
    extra_wait.setdefault(bar_after(320), []).append(lambda: tok["csw"])
    add(330.6, lambda: a(f"v_mov_b32 v{VSP+1}, v{VSW}"))
    M1 = Mg[1]
    fin = []
    for t in range(2):
        sm, gr = CSR + 4 * t, CSR + 8 + 4 * t
        fin.append(f"v_cndmask_b32 v{gr}, v{gr}, v{gr+1}, s[32:33]")
        fin.append(f"v_cndmask_b32 v{gr+2}, v{gr+2}, v{gr+3}, s[32:33]")
        fin.append(f"v_mul_f32 v{sm}, {-1.0/576!r}, v{sm}")
        fin.append(f"v_cndmask_b32 v{gr}, v{gr}, v{gr+2}, s[34:35]")
        fin.append(f"v_mov_b32 v{MEAN+t}, v{sm}")
        fin.append(f"v_mul_f32 v{gr}, {1.0/576!r}, v{gr}")
        fin.append(f"v_fma_f32 v{gr}, -v{sm}, v{sm}, v{gr}")
        fin.append(f"v_max_f32 v{gr}, 0, v{gr}")
        fin.append(f"v_add_f32 v{gr}, 0x3727c5ac, v{gr}")
        fin.append(f"v_rcp_f32 v{sm+1}, v{gr}")
    for i, s_ in enumerate(fin): add(M1 + 5.6 + i, (lambda s_=s_: a(s_)))
    for t in range(2):
        def f(t=t): tok["stw"] = a.lg(f"ds_write_b64 v{VSP+1}, v[{CSR+4*t}:{CSR+4*t+1}] offset:{128*t}")
        add(M1 + 27.6 + 0.1 * t, f)
    bi = bar_after(M1 + 29)
    extra_wait.setdefault(bi, []).append(lambda: tok["stw"])
    for t in range(2):
        def f(t=t): tok["str"] = a.lg(f"ds_read_b32 v{MEAN+2+t}, v{VSR} offset:{128*t}")
        add(bars[bi][0] + 2.6 + t, f)
    ep0_start = bars[bi][0] + 5
    def ep_items(g):
        items = []
        nt = 2 if g < 4 else 1
        for j in range(2 * nt):
            def f(j=j):
                if g < 4: base, off = VC, g * 256 + (j % 2) * 64 + (j // 2) * 1280
                else: base, off = VC + 1, j * 1280
                tok[("c", g)] = a.lg(f"ds_read_b128 v[{CSR+4*j}:{CSR+4*j+3}], v{base} offset:{off}")
            items.append(f)
        for t in range(4):
            b = ACC + 64 * (g % 2) + 4 * t
            o = ET + 4 * (t % 2)
            def mk(s_, w=False):
                def f():
                    if w: a.wait(tok[("c", g)], tok["str"])
                    a(s_)
                return f
            for j in range(2 * nt):
                for r in range(4): items.append(mk(f"v_fmac_f32 v{b+16*j+r}, v{MEAN+t}, v{CSR+4*j+r}", True))
            for j in range(nt):
                for r in range(4): items.append(mk(f"v_max_f32 v{b+16*j+r}, 0, v{b+16*j+r}"))
            for j in range(nt):
                for r in range(4): items.append(mk(f"v_mul_f32 v{b+16*j+r}, v{b+16*j+r}, v{b+16*(j+nt)+r}"))
            for j in range(nt):
                for r in range(2): items.append(mk(f"v_cvt_pk_bf16_f32 v{o+2*j+r}, v{b+16*j+2*r}, v{b+16*j+2*r+1}"))
            def st(t=t, o=o):
                if g < 4:
                    if g == 2: a(f"s_add_u32 s{SHS+t}, s{SHS+t}, 4096")
                    tok[("hs", g)] = a.vm(f"buffer_store_dwordx4 v[{o}:{o+3}], v3, s[24:27], s{SHS+t} offen offset:{(g%2)*2048} sc1")
                else:
                    a(f"s_add_u32 s{SHS+t}, s{SHS+t}, s{SHH}")
                    a(f"s_sub_u32 s{SHS+t}, s{SHS+t}, 4096")
                    tok[("hs", g)] = a.vm(f"buffer_store_dwordx2 v[{o}:{o+1}], v{VH8}, s[24:27], s{SHS+t} offen sc1")
                if t == 3: tok[("hsd", g)] = tok[("hs", g)]
            items.append(st)
        return items
    Mg[5] = M5
    for g in range(5):
        st0 = ep0_start if g == 0 else Mg[g + 1] + 3
        for i, it in enumerate(ep_items(g)): addlo(st0 + (0 if i < 4 else 4), it)
    def publish(level):
        def f():
            L = label("PUB")
            a("s_cmp_lg_u32 s36, 0")
            a(f"s_cbranch_scc1 {L}")
            a("s_mov_b64 exec, 1")
            a(f"v_mov_b32 v{VT}, s3")
            a(f"buffer_store_dword v{VT}, v4, s[24:27], s{SFLHO} offen offset:{4*level} sc1")
            a("s_mov_b64 exec, -1")
            a(f"{L}:")
        return f
    if C.stop != "g1":
        M3, M4 = Mg[3], Mg[4]
        for level, (g, p) in enumerate([(1, M3 + 20), (2, M3 + 215), (3, M5 + 75), (4, M5 + 170)]):
            bi = bar_after(p)
            extra_wait.setdefault(bi, []).append(lambda g=g: tok[("hsd", g)])
            post[bi] = publish(level)
        chk_at = {0: M4 + 2, 1: M4 + 70, 2: M5 + 200, 3: M5 + 320}
        for level in range(4):
            hl2 = [(VT + 1, VFL, f"s{SFLH}", 4 * level)]
            add(chk_at[level] - 40.4, flagload(hl2, ("hf", level)))
            add(chk_at[level] + 0.6, (lambda hl2=hl2, level=level: check(hl2, tok[("hf", level)])))
        prev = -1
        for h in range(72):
            kap, st = h // 2, h % 2
            level = 0 if kap < 16 else 1 if kap < 24 else 2 if kap < 32 else 3
            at = chk_at[level] + 1
            if h < 58: at = max(at, M4 + 8 * (h // 4 + 1) + 0.7)
            at = max(at, prev + 2); prev = at
            def f(h=h, kap=kap, st=st):
                if h == 58: assert ("hsd", 3) in tok
                fb = kap_fb(kap)
                f_, r = hreg(h)
                a(f"s_add_u32 s73, s{SHL+st}, {fb*1024}")
                tok[("h", h)] = a.vm(f"buffer_load_dwordx4 {f_}[{r}:{r+3}], v3, s[24:27], s73 offen sc1")
            add(at, f)
        def xsetup():
            a(f"s_lshl_b32 s68, s{SRB}, 2")
            a(f"s_add_u32 s68, s68, s{SCQ}")
            a("s_lshl_b32 s69, s68, 2")
            a("s_add_u32 s69, s69, s36")
            a("s_lshl_b32 s70, s69, 4")
            a(f"s_add_u32 s70, s70, {FLX}")
            a("s_lshl_b32 s69, s69, 13")
            a(f"s_add_u32 s69, s69, {PY_OFF}")
            a("s_mul_i32 s68, s68, 196608")
            a("s_lshl_b32 s71, s36, 12")
            a("s_add_u32 s68, s68, s71")
            a(f"s_add_u32 s68, s68, {PX_OFF}")
        add(M6 - 30.4, xsetup)
        for z in range(7):
            for st in range(2):
                def f(z=z, st=st):
                    f_, r = xreg(58 + 2 * z + st)
                    if z < 6:
                        e, ab = z // 2 + 1, z % 2
                        if ab == 0 and st == 0:
                            a(f"s_add_u32 s72, s{SKQ}, {e}")
                            a("s_and_b32 s72, s72, 3")
                            a("s_mul_i32 s72, s72, 49152")
                            a("s_add_u32 s72, s72, s68")
                            a(f"s_add_u32 s72, s72, {(e-1)*16384}")
                        imm = (2 * st + ab) * 1024
                    else:
                        if st == 0:
                            a(f"s_lshl_b32 s72, s{SKQ}, 11")
                            a("s_add_u32 s72, s72, s69")
                        imm = st * 1024
                    tok["px"] = a.vm(f"buffer_store_dwordx4 {f_}[{r}:{r+3}], v3, s[24:27], s72 offen offset:{imm} sc1")
                add(M6 + 0.6 + 1.5 * (2 * z + st), f)
        def xflag():
            a.wait(tok["px"])
            a(f"s_lshl_b32 s71, s{SKQ}, 2")
            a("s_add_u32 s71, s71, s70")
            a("s_mov_b64 exec, 1")
            a(f"v_mov_b32 v{VT}, s3")
            a.vm(f"buffer_store_dword v{VT}, v4, s[24:27], s71 offen sc1")
            a("s_mov_b64 exec, -1")
        add(M6 + 80.6, xflag)
        HR = B1
        VR1, VR2 = B1 + 24, B1 + 25
        def rsetup():
            a(f"v_lshrrev_b32 v5, 4, v2")
            a(f"v_and_b32 v6, 15, v2")
            a(f"v_lshlrev_b32 v{VR1}, 1, v6")
            a(f"v_lshl_add_u32 v{VR2}, v5, 14, v{VR1}")
            a(f"v_lshl_add_u32 v{VR1}, v5, 15, v{VR1}")
            a(f"s_mul_i32 s37, s{SCQ}, 144")
            a(f"s_lshl_b32 s38, s{SKQ}, 5")
            a("s_add_u32 s38, s38, s37")
            a("s_add_u32 s37, s37, 128")
            a(f"s_lshl_b32 s39, s{SRB}, 7")
            a("s_lshl_b32 s71, s36, 5")
            a("s_add_u32 s39, s39, s71")
            a("s_lshl_b32 s71, s39, 1")
            a(f"s_add_u32 s71, s71, {HT_OFF}")
            a("s_lshl_b32 s32, s38, 12")
            a("s_add_u32 s32, s32, s71")
            a("s_lshl_b32 s33, s37, 12")
            a("s_add_u32 s33, s33, s71")
        add(M6 + 30.6, rsetup)
        for j in range(24): add(M6 + 32.6 + 0.5 * j, (lambda j=j: a(f"v_mov_b32 v{HR+j}, 0")))
        for j in range(12):
            for st in range(2):
                def f(j=j, st=st):
                    if j < 8: va, sreg, r = VR1, 32, HR + 8 * st + j
                    else: va, sreg, r = VR2, 33, HR + 16 + 4 * st + j - 8
                    tok["hr"] = a.vm(f"buffer_load_short_d16_hi v{r}, v{va}, s[24:27], s{sreg} offen offset:{32*st} sc1")
                    if st == 1: a(f"s_add_u32 s{sreg}, s{sreg}, 4096")
                add(M6 + 82.6 + (2 * j + st), f)
        R2 = B1 + 26
        VO = B1 + 28
        def osetup():
            a(f"v_add_u32 v7, s39, v6")
            a(f"v_mul_u32_u24 v7, 1152, v7")
            a("s_lshl_b32 s38, s38, 1")
            a("s_lshl_b32 s37, s37, 1")
            a(f"v_lshl_add_u32 v{VO}, v5, 4, v7")
            a(f"v_add_u32 v{VO}, s38, v{VO}")
            a(f"v_lshl_add_u32 v{VO+1}, v5, 3, v7")
            a(f"v_add_u32 v{VO+1}, s37, v{VO+1}")
            a("s_lshl_b32 s71, s36, 8")
            a(f"s_add_u32 s71, s71, {G1_STX + 4}")
            a(f"v_lshl_add_u32 v7, v6, 3, s71")
            a.lg(f"ds_read_b32 v{R2}, v7")
            tok["r2"] = a.lg(f"ds_read_b32 v{R2+1}, v7 offset:128")
            srd(a, 12, POUT, POUT + 1, SD_BYTES)
            a(f"s_mov_b32 s34, {16*1152}")
            a(f"s_mul_i32 s72, s{SKQ}, 49152")
            a("s_add_u32 s72, s72, s68")
        add(M6 + 50.6, osetup)
        xl = [(VT + 1, VFL + 1, "s70", 0)]
        add(M6 + 118.6, flagload(xl, "xf"))
    hi.sort(key=lambda x: (x[0], x[1]))
    hi_i = 0; lo_i = 0
    while hi_i < len(hi) and hi[hi_i][0] < 0:
        hi[hi_i][2](); hi_i += 1
    over = 0
    for m, (d, A, B, first, keys) in enumerate(mf):
        for g in range(3):
            if m == Mg[g + 2]:
                assert ("hsd", g) in tok, f"epilogue {g} not finished"
        a.wait(*[tok[k] for k in keys])
        src = "0" if first else rr(*d)
        a(f"v_mfma_f32_16x16x32_bf16 {rr(*d)}, {rr(*A)}, {rr(*B)}, {src}")
        n0 = len(a.lines)
        while hi_i < len(hi) and hi[hi_i][0] < m + 1:
            hi[hi_i][2](); hi_i += 1
        nxt_wait = 0
        if m + 1 < NM:
            for k in mf[m + 1][4]:
                t = tok[k]
                if (t.kind == "lg" and t.idx > a.lg_done) or (t.kind == "vm" and t.idx > a.vm_done): nxt_wait = 1
        while lo_i < len(lo) and lo[lo_i][0] <= m and len(a.lines) - n0 + nxt_wait < 2:
            lo[lo_i][1](); lo_i += 1
        over += max(0, len(a.lines) - n0 + nxt_wait - 2)
        if m == 0: stamp(a, 9)
        if m + 1 == Mg[1]: stamp(a, 10)
        if m + 1 == Mg[4]: stamp(a, 11)
        if m + 1 == M5: stamp(a, 12)
        if C.stop != "g1" and m + 1 == M6: stamp(a, 13)
        if m + 1 == NM: stamp(a, 14)
    print("mfma", NM, "overfull slots", over, "lo left", len(lo) - lo_i)
    assert hi_i == len(hi)
    if lo_i < len(lo): a("s_nop 7")
    while lo_i < len(lo):
        lo[lo_i][1](); lo_i += 1
    if C.stop == "g1": return
    check(xl, tok["xf"])
    RB = [ACC, ACC + 16, ACC + 48]
    tl = {}
    for e in range(3):
        if e: a("s_add_u32 s72, s72, 16384")
        for j in range(4):
            tl[(e, j)] = a.vm(f"buffer_load_dwordx4 v[{RB[e]+4*j}:{RB[e]+4*j+3}], v3, s[24:27], s72 offen offset:{1024*j} sc1")
    a(f"s_cmp_lg_u32 s36, s{SKQ}")
    a("s_cbranch_scc1 F_n8")
    Y = AR
    for src in range(4):
        if src == 2: a("s_add_u32 s69, s69, 4096")
        for st in range(2):
            a(f"buffer_load_dwordx4 v[{Y+8*src+4*st}:{Y+8*src+4*st+3}], v3, s[24:27], s69 offen offset:{(src%2)*2048 + st*1024} sc1")
    a("s_waitcnt vmcnt(0) lgkmcnt(0)")
    for j in range(8):
        a(f"v_add_f32 v{Y+j}, v{Y+j}, v{Y+8+j}")
        a(f"v_add_f32 v{Y+16+j}, v{Y+16+j}, v{Y+24+j}")
    for j in range(8): a(f"v_add_f32 v{Y+j}, v{Y+j}, v{Y+16+j}")
    for j in range(8): a(f"v_fmac_f32 v{HR+16+j}, v{Y+j}, v{R2+j//4}")
    for j in range(4): a(f"v_cvt_pk_bf16_f32 v{Y+j}, v{HR+16+2*j}, v{HR+17+2*j}")
    a(f"buffer_store_dwordx2 v[{Y}:{Y+1}], v{VO+1}, s[12:15], 0 offen")
    a(f"buffer_store_dwordx2 v[{Y+2}:{Y+3}], v{VO+1}, s[12:15], s34 offen")
    a("s_branch F_j8")
    a("F_n8:")
    a("s_waitcnt vmcnt(0) lgkmcnt(0)")
    a("F_j8:")
    for j in range(16):
        a(f"v_add_f32 v{A2+j}, v{A2+j}, v{RB[0]+j}")
        a(f"v_add_f32 v{RB[1]+j}, v{RB[1]+j}, v{RB[2]+j}")
    for j in range(16): a(f"v_add_f32 v{A2+j}, v{A2+j}, v{RB[1]+j}")
    for j in range(16): a(f"v_fmac_f32 v{HR+j}, v{A2+j}, v{R2+j//8}")
    for j in range(8): a(f"v_cvt_pk_bf16_f32 v{ACC+j}, v{HR+2*j}, v{HR+2*j+1}")
    a(f"buffer_store_dwordx4 v[{ACC}:{ACC+3}], v{VO}, s[12:15], 0 offen")
    a(f"buffer_store_dwordx4 v[{ACC+4}:{ACC+7}], v{VO}, s[12:15], s34 offen")
```

```python
from common import *

KC_STRIDE = 4160
K1_U = 4 * 4 * KC_STRIDE
K1_ST = K1_U + 4 * 4608
K1_LDS = K1_ST + 16384
P0L = K1_LDS
P0S = 10112
RING = 16384
SLOT = 24576
LDS_TOTAL = 163840

PQ, PK, PV, PSH, PSK, PSD, PBX, PWG, PWU, PWD, POUT, PDBG, PWS = range(40, 66, 2)

def prologue(a):
    a("s_cmp_ge_u32 s2, 256")
    a("s_cbranch_scc1 END")
    stamp_init(a)
    a("s_load_dwordx16 s[40:55], s[0:1], 0")
    a("s_load_dwordx8 s[56:63], s[0:1], 64")
    a("s_load_dwordx2 s[64:65], s[0:1], 96")
    a("v_lshrrev_b32 v1, 6, v0")
    a("v_and_b32 v2, 63, v0")
    a("v_readfirstlane_b32 s36, v1")
    a("s_and_b32 s28, s2, 7")
    a("s_lshr_b32 s29, s2, 3")
    a("v_lshlrev_b32 v3, 4, v2")
    a("v_mov_b32 v4, 0")

def kdma(a):
    a("s_mul_i32 s34, s28, 18")
    a("s_add_u32 s34, s34, s29")
    a("s_lshl_b32 s34, s34, 2")
    a("s_add_u32 s34, s34, s36")
    a("s_lshl_b32 s35, s34, 12")
    srd(a, 12, PSK, PSK + 1, SD_BYTES)
    a(f"s_mul_i32 s30, s36, {4*KC_STRIDE}")
    a("s_add_u32 s66, s35, 2")
    a("s_add_u32 s67, s35, 4")
    a("s_add_u32 s68, s35, 6")
    so = ["s35", "s66", "s67", "s68"]
    a.vm("buffer_load_dwordx2 v[60:61], v4, s[12:15], s35 offen")
    for r in range(4):
        a(f"s_add_u32 m0, s30, {r*KC_STRIDE+32}")
        a("s_nop 0")
        for z in range(4):
            a.vm(f"buffer_load_dwordx4 v3, s[12:15], {so[r]} offen offset:{1024*z} lds")
    return 17

def p0(a):
    a("s_and_b32 s30, s29, 3")
    a("s_lshl_b32 s31, s28, 2")
    a("s_add_u32 s30, s30, s31")
    a("s_lshr_b32 s31, s29, 2")
    a("s_lshl_b32 s32, s31, 5")
    a("s_add_u32 s32, s32, s30")
    a(f"s_mul_i32 s32, s32, {C.fs0}")
    a(f"s_add_u32 s32, s32, {FL0}")
    a("s_cmp_eq_u32 s36, 3")
    a("s_cbranch_scc1 P0_st1")
    a("v_mul_u32_u24 v5, 57, v2")
    a("v_lshrrev_b32 v5, 9, v5")
    a("v_mul_u32_u24 v6, 9, v5")
    a("v_sub_u32 v6, v2, v6")
    a(f"s_mul_i32 s33, s30, {64*1152}")
    a("s_mul_i32 s37, s31, 144")
    a("s_add_u32 s33, s33, s37")
    a(f"s_sub_u32 s33, s33, {4*1152}")
    a("v_mul_u32_u24 v5, 1152, v5")
    a("v_lshl_add_u32 v5, v6, 4, v5")
    a("v_add_u32 v10, s33, v5")
    for n in range(1, 10): a(f"v_add_u32 v{10+n}, {7*1152*n}, v10")
    a(f"s_mul_i32 s38, s36, {P0S}")
    a(f"s_add_u32 s38, s38, {P0L}")
    a("s_mul_i32 s37, s31, 72")
    a("s_mul_i32 s39, s36, 24")
    a("s_add_u32 s37, s37, s39")
    a("v_and_b32 v6, 7, v2")
    a("v_add_u32 v6, s37, v6")
    a("v_lshlrev_b32 v7, 3, v6")
    a("s_waitcnt lgkmcnt(0)")
    stamp(a, 1)
    a("s_cmp_eq_u32 s36, 0")
    a(f"s_cselect_b32 s8, s{PK}, s{PV}")
    a(f"s_cselect_b32 s9, s{PK+1}, s{PV+1}")
    a("s_cmp_eq_u32 s36, 2")
    a(f"s_cselect_b32 s8, s{PQ}, s8")
    a(f"s_cselect_b32 s9, s{PQ+1}, s9")
    a(f"s_mov_b32 s10, {SD_BYTES}")
    a("s_mov_b32 s11, 0x00020000")
    for n in range(10):
        a(f"s_add_u32 m0, s38, {1008*n}")
        if n == 0: srd(a, 24, PWS, PWS + 1, WS_BYTES)
        else: a("s_nop 0")
        a.vm(f"buffer_load_dwordx4 v{10+n}, s[8:11], 0 offen lds")
    srd(a, 16, PSH, PSH + 1, D * 8)
    for e in range(3):
        a.vm(f"buffer_load_dwordx2 v[{20+2*e}:{21+2*e}], v7, s[16:19], 0 offen offset:{64*e}")
    a("s_branch P0_j1")
    a("P0_st1:")
    a("v_lshrrev_b32 v5, 3, v2")
    a("s_lshl_b32 s33, s30, 6")
    a("s_lshl_b32 s37, s31, 3")
    a("s_add_u32 s33, s33, s37")
    a("v_add_u32 v5, s33, v5")
    a("v_mul_u32_u24 v6, 1152, v5")
    a("v_and_b32 v7, 7, v2")
    a("v_lshl_add_u32 v6, v7, 4, v6")
    a("s_waitcnt lgkmcnt(0)")
    stamp(a, 1)
    srd(a, 8, PQ, PQ + 1, SD_BYTES)
    srd(a, 24, PWS, PWS + 1, WS_BYTES)
    for j in range(9):
        a.vm(f"buffer_load_dwordx4 v[{12+4*j}:{15+4*j}], v6, s[8:11], 0 offen offset:{128*j}")
    a("P0_j1:")
    a(f"s_mov_b32 s33, {EP_OFF}")
    a.vm("buffer_load_dword v62, v4, s[24:27], s33 offen sc1")
    a("s_cmp_ge_u32 s29, 18")
    a("s_cbranch_scc1 P0_nk")
    n = kdma(a)
    a(f"s_waitcnt vmcnt({n})")
    a("s_branch P0_j2")
    a("P0_nk:")
    a("s_waitcnt vmcnt(0)")
    a("P0_j2:")
    a.vm_issued = a.vm_done = 0
    a("v_readfirstlane_b32 s3, v62")
    a("s_barrier")
    stamp(a, 2)
    a("s_add_u32 s3, s3, 1")
    a("s_mov_b32 s69, 0xffff0000")
    a("s_cmp_eq_u32 s36, 3")
    a("s_cbranch_scc1 P0_st2")
    a("v_lshrrev_b32 v8, 4, v2")
    a("v_bfe_u32 v9, v2, 1, 1")
    a("v_lshlrev_b32 v8, 4, v8")
    a("v_lshl_add_u32 v8, v9, 3, v8")
    a("v_bfe_u32 v9, v2, 2, 2")
    a("v_add_u32 v8, v8, v9")
    a("v_mul_u32_u24 v8, 144, v8")
    a("v_and_b32 v9, 1, v2")
    a("v_lshl_add_u32 v8, v9, 3, v8")
    a("s_mul_i32 s39, s36, 48")
    a(f"s_add_u32 s39, s39, {P0L}")
    a("v_add_u32 v8, s39, v8")
    KR, VR_, QR = 64, 82, 96
    tk = []; tq = []
    for e in range(3):
        for h in range(3): a.lg(f"ds_read_b64_tr_b16 v[{KR+6*e+2*h}:{KR+6*e+2*h+1}], v8 offset:{16*e + 576*h}")
        for h in range(2): t = a.lg(f"ds_read_b64_tr_b16 v[{VR_+4*e+2*h}:{VR_+4*e+2*h+1}], v8 offset:{P0S + 16*e + 576*(h+1)}")
        tk.append(t)
    for e in range(3):
        for h in range(2): t = a.lg(f"ds_read_b64_tr_b16 v[{QR+4*e+2*h}:{QR+4*e+2*h+1}], v8 offset:{2*P0S + 16*e + 576*(h+1)}")
        tq.append(t)
    a("s_and_b32 s30, s29, 3")
    a("s_lshl_b32 s31, s28, 2")
    a("s_add_u32 s30, s30, s31")
    a("s_lshl_b32 s30, s30, 7")
    a("v_lshrrev_b32 v9, 3, v2")
    a("v_lshl_add_u32 v9, v9, 4, s30")
    a("v_lshl_add_u32 v9, v6, 12, v9")
    a("s_mov_b32 s70, 0x0000ffff")
    WP = 28
    for e in range(3):
        w01, w23 = 20 + 2 * e, 21 + 2 * e
        b = WP + 5 * e
        a(f"v_alignbit_b32 v{b}, v{w23}, v{w23}, 16")
        a(f"v_alignbit_b32 v{b+1}, v{w01}, v{w01}, 16")
        a(f"v_and_b32 v{b+2}, s69, v{w23}")
        a(f"v_bfi_b32 v{b+3}, s70, v{w23}, v{w01}")
        a(f"v_and_b32 v{b+4}, s70, v{w01}")
    KS = 108; O = 116
    for e in range(3):
        b = WP + 5 * e; k = KR + 6 * e; v = VR_ + 4 * e
        a.wait(tk[e])
        for m in range(4):
            a(f"v_dot2_f32_bf16 v{KS+2*m}, v{k+m}, v{b+2}, 0")
            a(f"v_dot2_f32_bf16 v{KS+2*m+1}, v{k+m+1}, v{b}, 0")
        for m in range(4):
            a(f"v_dot2_f32_bf16 v{KS+2*m}, v{k+m+1}, v{b+3}, v{KS+2*m}")
            a(f"v_dot2_f32_bf16 v{KS+2*m+1}, v{k+m+2}, v{b+1}, v{KS+2*m+1}")
        for m in range(4):
            a(f"v_dot2_f32_bf16 v{KS+2*m}, v{k+m+2}, v{b+4}, v{KS+2*m}")
        T = 44
        for m in range(4):
            a(f"v_lshlrev_b32 v{T+2*m}, 16, v{v+m}")
            a(f"v_and_b32 v{T+2*m+1}, s69, v{v+m}")
        for j in range(8):
            a(f"v_mul_f32 v{T+j}, v{T+j}, v{KS+j}")
        o = O + 4 * e
        for m in range(4):
            a(f"v_cvt_pk_bf16_f32 v{o+m}, v{T+7-2*m}, v{T+6-2*m}")
        a(f"s_mov_b32 s71, {UT_OFF + 8*4096*e}")
        a.vm(f"buffer_store_dwordx4 v[{o}:{o+3}], v9, s[24:27], s71 offen sc1")
        a.wait(tq[e])
        a(f"s_mov_b32 s72, {XT_OFF + 8*4096*e}")
        a.vm(f"buffer_store_dwordx4 v[{QR+4*e}:{QR+4*e+3}], v9, s[24:27], s72 offen sc1")
    a("s_branch P0_j3")
    a("P0_st2:")
    a("s_mov_b32 s70, 0x3f803f80")
    for i in range(4): a(f"v_mov_b32 v{48+i}, 0")
    for j in range(36):
        a(f"v_dot2c_f32_bf16 v{48 + j%2}, s70, v{12+j}")
        a(f"v_dot2c_f32_bf16 v{50 + j%2}, v{12+j}, v{12+j}")
    a("s_nop 2")
    a("v_add_f32 v48, v48, v49")
    a("v_add_f32 v50, v50, v51")
    for ctrl in ("quad_perm:[1,0,3,2]", "quad_perm:[2,3,0,1]", "row_half_mirror"):
        a("s_nop 1")
        a(f"v_add_f32_dpp v48, v48, v48 {ctrl} row_mask:0xf bank_mask:0xf")
        a(f"v_add_f32_dpp v50, v50, v50 {ctrl} row_mask:0xf bank_mask:0xf")
    a(f"v_mul_f32 v48, {1.0/576!r}, v48")
    a(f"v_mul_f32 v50, {1.0/576!r}, v50")
    a("v_fma_f32 v50, -v48, v48, v50")
    a("v_max_f32 v50, 0, v50")
    a("v_add_f32 v50, 0x3727c5ac, v50")
    a("v_rsq_f32 v52, v50")
    a("v_lshlrev_b32 v5, 3, v5")
    a("v_mul_f32 v53, v48, v52")
    a("v_sub_f32 v53, 0, v53")
    a(f"s_mov_b32 s71, {ST_OFF}")
    a("v_cmp_eq_u32 vcc, 0, v7")
    a("s_and_saveexec_b64 s[72:73], vcc")
    a.vm("buffer_store_dwordx2 v[52:53], v5, s[24:27], s71 offen sc1")
    a("s_mov_b64 exec, -1")
    a("P0_j3:")
    stamp(a, 3)
    a("s_waitcnt vmcnt(0)")
    a.vm_issued = a.vm_done = 0; a.lg_issued = a.lg_done = 0
    a("s_barrier")
    a("s_cmp_lg_u32 s36, 0")
    a("s_cbranch_scc1 P0_j4")
    flag_store(a, 8, 32)
    a("P0_j4:")
    a.vm_issued = a.vm_done = 0

def conv(a, wpre):
    a("s_lshl_b32 s37, s34, 1")
    a("s_and_b32 s38, s37, 0xfffffffc")
    a(f"s_load_dword s39, s[{PSD}:{PSD+1}], s38")
    a(f"s_mul_i32 s30, s36, {4*KC_STRIDE}")
    a("s_mul_i32 s31, s36, 4608")
    a(f"s_add_u32 s31, s31, {K1_U}")
    a("v_and_b32 v5, 15, v2")
    a("v_lshrrev_b32 v6, 4, v2")
    a("v_lshlrev_b32 v7, 5, v5")
    a("v_lshl_add_u32 v7, v6, 3, v7")
    a("v_mov_b32 v12, 0\nv_mov_b32 v13, 0\nv_mov_b32 v14, 0\nv_mov_b32 v15, 0")
    a("v_and_b32 v8, 31, v2")
    a("v_lshl_add_u32 v9, v8, 4, s31")
    a.lg("ds_write_b128 v9, v[12:15]")
    a(f"v_mul_u32_u24 v10, {C.fs0}, v8")
    a(f"s_mul_i32 s66, s28, {32*C.fs0}")
    a(f"s_add_u32 s66, s66, {FL0}")
    a("v_lshrrev_b32 v11, 3, v2")
    a("v_lshlrev_b32 v11, 5, v11")
    a("v_and_b32 v9, 7, v2")
    a("v_add_u32 v11, v11, v9")
    a(f"v_mul_u32_u24 v11, {C.fs0}, v11")
    a(f"s_mul_i32 s67, s36, {8*C.fs0}")
    a(f"s_add_u32 s67, s67, {FL0}")
    a("v_add_u32 v9, 1, v5")
    a("v_and_b32 v9, 3, v9")
    a("v_lshlrev_b32 v32, 3, v6")
    a("v_sub_u32 v32, v5, v32")
    a("v_sub_u32 v32, v32, v9")
    a("v_add_u32 v32, 25, v32")
    a("v_lshlrev_b32 v32, 1, v32")
    a(f"v_mul_u32_u24 v9, {KC_STRIDE}, v9")
    a("v_add3_u32 v32, v32, v9, s30")
    a("v_lshlrev_b32 v33, 5, v5")
    a("v_lshl_add_u32 v33, v6, 4, v33")
    a("v_add3_u32 v33, v33, s31, 32")
    a("v_lshrrev_b32 v9, 1, v6")
    a("v_lshlrev_b32 v34, 5, v5")
    a("v_lshl_add_u32 v34, v9, 4, v34")
    a("v_and_b32 v9, 1, v6")
    a("v_xor_b32 v9, 1, v9")
    a("v_lshl_add_u32 v34, v9, 3, v34")
    a("v_add_u32 v34, s31, v34")
    a(f"v_lshlrev_b32 v35, 2, v7")
    a(f"v_add_u32 v35, {K1_ST}, v35")
    a("v_lshrrev_b32 v36, 2, v5")
    a("v_and_b32 v37, 3, v5")
    a("v_lshlrev_b32 v38, 4, v36")
    a("v_sub_u32 v38, 64, v38")
    a(f"v_mul_u32_u24 v39, {KC_STRIDE}, v36")
    a("v_lshl_add_u32 v39, v37, 3, v39")
    a("v_add_u32 v39, s30, v39")
    a("v_cmp_eq_u32 vcc, 3, v37")
    a("v_cmp_ne_u32 s[70:71], 0, v36")
    a("s_and_b64 vcc, vcc, s[70:71]")
    a("v_lshlrev_b64 v[60:61], v38, v[60:61]")
    a("s_nop 0")
    a("v_cndmask_b32 v60, 0, v60, vcc")
    a("v_cndmask_b32 v61, 0, v61, vcc")
    a.lg("ds_write_b64 v39, v[60:61]")
    a("s_waitcnt lgkmcnt(0)"); a.lg_done = a.lg_issued
    a("s_and_b32 s37, s37, 2")
    a("s_lshl_b32 s37, s37, 3")
    a("s_lshr_b32 s39, s39, s37")
    a("s_lshl_b32 s39, s39, 16")
    a(f"s_add_u32 s68, s35, {UT_OFF}")
    a(f"s_add_u32 s70, s35, {XT_OFF}")
    a(f"s_add_u32 s71, s35, {HT_OFF}")
    a("s_lshl_b32 s72, s36, 12")
    ACC = 40; AR = 72; NR = 8; EP = 104; XR = 16
    atok = {}; btok = {}
    def load_a(c):
        r = AR + 4 * (c % NR)
        a.lg(f"ds_read_b64 v[{r}:{r+1}], v32 offset:{64*c}")
        atok[c] = a.lg(f"ds_read_b64 v[{r+2}:{r+3}], v32 offset:{64*c+8}")
    load_a(0); load_a(1)
    a("s_cmp_lg_u32 s36, 0")
    a("s_cbranch_scc1 CV_p1")
    poll(a, [(9, 10, "s66", 0)])
    a("CV_p1:")
    a("s_barrier")
    stamp(a, 4)
    a("s_add_u32 m0, s31, 512")
    a("s_nop 0")
    for z in range(4):
        a.vm(f"buffer_load_dwordx4 v3, s[24:27], s68 offen offset:{1024*z} sc1 lds")
    poll(a, [(9, 11, "s67", 0)])
    a(f"s_add_u32 m0, s72, {K1_ST}")
    a(f"s_add_u32 s72, s72, {ST_OFF}")
    def breg(j, rho): return 4 * (8 * rho + j)
    def load_b(j, rho):
        r = breg(j, rho)
        btok[(j, rho)] = a.lg(f"ds_read_b128 a[{r}:{r+3}], v33 offset:{512*j+64*(7-rho)}")
    for j in range(8): load_b(j, 0)
    for z in range(4):
        tst = a.vm(f"buffer_load_dwordx4 v3, s[24:27], s72 offen offset:{1024*z} sc1 lds")
    tx = [a.vm(f"buffer_load_dwordx2 v[{XR+2*t}:{XR+2*t+1}], v7, s[24:27], s70 offen offset:{512*t} sc1") for t in range(8)]
    stamp(a, 5)
    def ep_pieces(t):
        e = EP + (t % 2) * 24
        KV, STA, T0, O = e, e + 4, e + 12, e + 20
        toks = {}
        def p0_():
            if t == 0:
                a.wait(tst); a("s_barrier")
            toks["kv"] = a.lg(f"ds_read_b64 v[{KV}:{KV+1}], v34 offset:{512+512*t}")
            a.lg(f"ds_read_b128 v[{STA}:{STA+3}], v35 offset:{2048*t}")
            toks["st"] = a.lg(f"ds_read_b128 v[{STA+4}:{STA+7}], v35 offset:{2048*t+16}")
        ps = [p0_]
        acc = ACC + 4 * t
        x = XR + 2 * t
        def mk(s, w=None):
            def f():
                if w: a.wait(*[toks[k] if isinstance(k, str) else k for k in w])
                a(s)
            return f
        ps.append(mk(f"v_and_b32 v{T0}, s69, v{KV+1}", ["kv"]))
        ps.append(mk(f"v_lshlrev_b32 v{T0+1}, 16, v{KV+1}"))
        ps.append(mk(f"v_and_b32 v{T0+2}, s69, v{KV}"))
        ps.append(mk(f"v_lshlrev_b32 v{T0+3}, 16, v{KV}"))
        for r in range(4):
            ps.append(mk(f"v_fma_f32 v{T0+r}, v{T0+r}, s39, v{acc+r}"))
        ps.append(mk(f"v_lshlrev_b32 v{T0+4}, 16, v{x}", [tx[t]]))
        ps.append(mk(f"v_and_b32 v{T0+5}, s69, v{x}"))
        ps.append(mk(f"v_lshlrev_b32 v{T0+6}, 16, v{x+1}"))
        ps.append(mk(f"v_and_b32 v{T0+7}, s69, v{x+1}"))
        for r in range(4):
            ps.append(mk(f"v_fmac_f32 v{STA+2*r+1}, v{T0+4+r}, v{STA+2*r}", ["st"]))
        for r in range(4):
            ps.append(mk(f"v_fmac_f32 v{T0+4+r}, v{STA+2*r+1}, v{T0+r}"))
        ps.append(mk(f"v_cvt_pk_bf16_f32 v{O}, v{T0+4}, v{T0+5}"))
        ps.append(mk(f"v_cvt_pk_bf16_f32 v{O+1}, v{T0+6}, v{T0+7}"))
        def st(): a.vm(f"buffer_store_dwordx2 v[{O}:{O+1}], v7, s[24:27], s71 offen offset:{512*t} sc1")
        ps.append(st)
        return ps
    PF = 5
    pend = []
    nm = 0
    nexta = 2
    wpre = list(wpre)
    for c in range(64):
        i, rho = c // 8, c % 8
        for t in range(i, 8):
            j = t - i
            a.wait(atok[c], btok[(j, rho)])
            ra = AR + 4 * (c % NR); rb = breg(j, rho); acc = ACC + 4 * t
            src = "0" if c == 0 else f"v[{acc}:{acc+3}]"
            a(f"v_mfma_f32_16x16x32_bf16 v[{acc}:{acc+3}], v[{ra}:{ra+3}], a[{rb}:{rb+3}], {src}")
            nm += 1
            slots = 2
            if i == 0 and rho < 7:
                load_b(j, rho + 1); slots -= 1
            if nexta < 64 and nexta <= c + (2 if i == 0 else PF) and nexta - c < NR - 1 and (t == i or i > 0):
                load_a(nexta); nexta += 1; slots -= 2
            while slots > 0 and pend and pend[0][0] <= nm:
                pend.pop(0)[1](); slots -= 1
            if slots == 2 and wpre and nm > 90 and nm % 4 == 0:
                wpre.pop(0)()
            if rho == 7 and t == i:
                ps = ep_pieces(t)
                pend.append((nm, ps[0]))
                pend += [(nm + 5, p) for p in ps[1:]]
    assert not wpre
    stamp(a, 6)
    a("s_nop 7")
    for _, p in pend: p()

def colsum(a):
    a("s_sub_u32 s34, s2, 144")
    a("s_cmp_ge_u32 s34, 54")
    a("s_cbranch_scc1 HELP_done")
    a("s_mul_hi_u32 s35, s34, 0x55555556")
    a("s_mul_i32 s37, s35, 3")
    a("s_sub_u32 s37, s34, s37")
    a("s_cmp_ge_u32 s35, 9")
    a(f"s_cselect_b32 s8, s{PWU}, s{PWG}")
    a(f"s_cselect_b32 s9, s{PWU+1}, s{PWG+1}")
    a("s_cselect_b32 s38, 9, 0")
    a(f"s_mov_b32 s10, {D*F*2}")
    a("s_mov_b32 s11, 0x00020000")
    a("s_sub_u32 s38, s35, s38")
    a("s_lshl_b32 s38, s38, 10")
    a("s_lshl_b32 s39, s37, 2")
    a("s_add_u32 s39, s39, s36")
    a(f"s_mul_i32 s39, s39, {48*F*2}")
    a("s_add_u32 s38, s38, s39")
    L = 16
    tl = []
    for i in range(48):
        tl.append(a.vm(f"buffer_load_dwordx4 v[{L+4*i}:{L+4*i+3}], v3, s[8:11], s38 offen"))
        a(f"s_add_u32 s38, s38, {F*2}")
    for e in range(8): a(f"v_mov_b32 v{8+e}, 0")
    for i in range(48):
        a.wait(tl[i])
        for w in range(4):
            r = L + 4 * i + w
            a(f"v_lshlrev_b32 v6, 16, v{r}")
            a(f"v_and_b32 v7, s69, v{r}")
            a(f"v_add_f32 v{8+2*w}, v{8+2*w}, v6")
            a(f"v_add_f32 v{9+2*w}, v{9+2*w}, v7")
    a("v_lshlrev_b32 v6, 5, v0")
    a.lg("ds_write_b128 v6, v[8:11]")
    a.lg("ds_write_b128 v6, v[12:15] offset:16")
    a.wait_all(vm=False)
    a("s_barrier")
    a("v_lshlrev_b32 v6, 3, v0")
    tt = [a.lg(f"ds_read_b64 v[{8+2*e}:{9+2*e}], v6 offset:{2048*e}") for e in range(4)]
    a.wait(tt[3])
    for e in range(1, 4):
        a(f"v_add_f32 v8, v8, v{8+2*e}")
        a(f"v_add_f32 v9, v9, v{9+2*e}")
    a(f"s_mul_i32 s38, s37, {2*F*4}")
    a("s_lshl_b32 s39, s35, 11")
    a("s_add_u32 s38, s38, s39")
    a(f"s_add_u32 s38, s38, {CS_OFF}")
    a.vm("buffer_store_dwordx2 v[8:9], v6, s[24:27], s38 offen sc1")
    a("s_branch HELP_done")

def pack(a):
    a("s_sub_u32 s34, s2, 200")
    a("s_cmp_ge_u32 s34, 48")
    a("s_cbranch_scc1 HELP_done")
    srd(a, 8, PWD, PWD + 1, F * D * 2)
    a(f"s_mul_i32 s35, s34, {3*36864}")
    a("s_mul_i32 s37, s36, 9216")
    a("s_add_u32 s35, s35, s37")
    tl = []
    for u in range(3):
        for n in range(9):
            if n % 4 == 0:
                a(f"s_add_u32 m0, s37, {u*36864 + n*1024}")
                a(f"s_add_u32 s38, s35, {u*36864 + n*1024}")
            t = a.vm(f"buffer_load_dwordx4 v3, s[8:11], s38 offen offset:{(n%4)*1024} lds")
        tl.append(t)
    a("s_mul_hi_u32 s38, s34, 0x55555556")
    a("s_mul_i32 s39, s38, 3")
    a("s_sub_u32 s39, s34, s39")
    a("s_mul_i32 s39, s39, 3")
    a("s_lshr_b32 s30, s38, 2")
    a("s_and_b32 s31, s38, 3")
    a("s_lshl_b32 s33, s30, 2")
    a("s_add_u32 s33, s33, s36")
    a(f"s_mul_i32 s33, s33, {324*1024}")
    a(f"s_add_u32 s33, s33, {WD_OFF}")
    a("v_lshrrev_b32 v5, 2, v2")
    a("v_mul_u32_u24 v5, 1152, v5")
    a("v_and_b32 v6, 3, v2")
    a("s_mul_i32 s66, s36, 288")
    a("v_add_u32 v5, s66, v5")
    a("v_lshl_add_u32 v12, v6, 3, v5")
    a("v_lshl_add_u32 v5, v6, 4, v5")
    for e in range(4):
        a(f"s_add_u32 s66, s30, {e}")
        a("s_and_b32 s66, s66, 3")
        a("s_lshl_b32 s66, s66, 6")
        a(f"v_add_u32 v{8+e}, s66, v5")
    for u in range(3):
        a(f"s_add_u32 s66, s39, {u}")
        a("s_add_u32 s67, s66, 8")
        a("s_cmp_ge_u32 s67, 9")
        a("s_cselect_b32 s68, 9, 0")
        a("s_sub_u32 s67, s67, s68")
        a("s_bitcmp1_b32 s31, 0")
        a("s_cselect_b32 s66, s67, s66")
        a("s_lshr_b32 s67, s66, 1")
        a("s_lshl_b32 s67, s67, 3")
        a("s_and_b32 s68, s66, 1")
        a("s_add_u32 s67, s67, s68")
        a("s_lshl_b32 s68, s31, 1")
        a("s_add_u32 s67, s67, s68")
        a("s_add_u32 s68, s31, 32")
        a("s_cmp_eq_u32 s66, 8")
        a("s_cselect_b32 s67, s68, s67")
        a("s_mul_i32 s70, s67, 7168")
        a("s_add_u32 s70, s70, s33")
        a("s_add_u32 s71, s70, 4096")
        a("s_add_u32 s72, s67, 7")
        a("s_cmp_ge_u32 s72, 36")
        a("s_cselect_b32 s68, 36, 0")
        a("s_sub_u32 s72, s72, s68")
        a("s_lshl_b32 s72, s72, 11")
        a("s_add_u32 s72, s72, s33")
        a(f"s_add_u32 s72, s72, {252*1024}")
        a.wait(tl[u])
        a("s_barrier")
        if u == 1:
            for e in range(5): a(f"v_add_u32 v{8+e}, 36864, v{8+e}")
        R = 16 + 36 * u
        uo = 36864 if u == 2 else 0
        lst = []
        for e in (1, 2, 3):
            for ab in range(2): lst.append((8 + e, 8 * ab, (e - 1) * 2 + ab, None))
        lst.append((12, 256, 6, None))
        for ab in range(2): lst.append((8, 8 * ab, None, ab))
        tt = []
        for n, (va, off, p1, p2) in enumerate(lst):
            r = R + 4 * n
            a.lg(f"ds_read_b64_tr_b16 v[{r}:{r+1}], v{va} offset:{uo + off}")
            tt.append(a.lg(f"ds_read_b64_tr_b16 v[{r+2}:{r+3}], v{va} offset:{uo + off + 16*1152}"))
        for n, (va, off, p1, p2) in enumerate(lst):
            r = R + 4 * n
            a.wait(tt[n])
            if p1 is not None: so, imm = ("s70", p1 * 1024) if p1 < 4 else ("s71", (p1 - 4) * 1024)
            else: so, imm = "s72", p2 * 1024
            a.vm(f"buffer_store_dwordx4 v[{r}:{r+3}], v3, s[24:27], {so} offen offset:{imm} sc1")
```

```python
from common import *
from pa import *
from ffn import *
import common

def kernel():
    common._lab[0] = 0
    a = Asm(); slow = Asm()
    prologue(a)
    p0(a)
    if C.stop != "p0":
        a("s_cmp_ge_u32 s29, 18")
        a("s_cbranch_scc1 HELP")
        setup_early(a)
        wpre = [(lambda c=c, n=n: wdma(a, 0, c, 4 + c, n)) for c in range(2) for n in range(6)]
        conv(a, wpre)
        a("s_branch JOIN")
        a("HELP:")
        a.vm_issued = a.vm_done = a.lg_issued = a.lg_done = 0
        a("s_cmp_ge_u32 s29, 25")
        a("s_cbranch_scc1 PACK")
        colsum(a)
        a("PACK:")
        a.vm_issued = a.vm_done = a.lg_issued = a.lg_done = 0
        pack(a)
        a("HELP_done:")
        a.vm_issued = a.vm_done = a.lg_issued = a.lg_done = 0
        setup_early(a)
        for c in range(2):
            for n in range(6): wdma(a, 0, c, 4 + c, n)
        a("JOIN:")
        a("s_waitcnt lgkmcnt(0)")
        a.lg_issued = a.lg_done = 0
        setup_late(a)
        ffn(a, slow)
    stamp_flush(a, 15, 8)
    a("END:")
    a("s_endpgm")
    a.lines += slow.lines
    return a, dict(grid=256, block=256, lds=LDS_TOTAL, vgpr=512, accum=256)

if __name__ == "__main__":
    for stop in ("p0", "p1", "g1", None):
        C.stop = stop
        build(*kernel(), f"m_{stop or 'all'}.s")
    C.stamps = True
    build(*kernel(), "m_st.s")
    C.stamp_ins = "s_memtime"
    build(*kernel(), "m_cyc.s")
```

```python
import sys
sys.path.insert(0, "work2")
from fw import *
from asmlib import *

S, D, F = 2048, 576, 4608
UT_OFF = 0x0000000
XT_OFF = 0x0240000
HT_OFF = 0x0480000
ST_OFF = 0x06C0000
CS_OFF = 0x06C8000
FL_OFF = 0x0700000
FL0 = FL_OFF
FL1 = FL_OFF + 0x8000
FLA = FL_OFF + 0x10000
FLX = FL_OFF + 0x20000
EP_OFF = FL_OFF + 0x60000
HH_OFF = 0x0800000
WD_OFF = 0x1A00000
PX_OFF = 0x2000000
PY_OFF = 0x2C00000
WS_BYTES = 268435456
SD_BYTES = S * D * 2
STAMP_OFF = 0x8000000

class Cfg:
    stamps = False
    stamp_ins = "s_memrealtime"
    stop = None
    fs0 = 64
    fs1 = 64
    abl = set()
    dbg = None
    ka = 14
    misc0 = 100
    ssp = 9
    rx1 = 50
    rx2 = 115
    cap3 = 3
    fst = ["1", "Mg[1]", "Mg[3]", "M5", "M6", "NM"]
    maxlead = {("D", 11): 2, ("D", 12): 2, ("D", 13): 2}
    pub3 = 150
    hsp = 8.6
    late0 = 240
    hsp2 = 6
    hpre = 8
    kpre = False
C = Cfg

NST = 16
def stamp(a, i):
    if not C.stamps: return
    a(f"{C.stamp_ins} s[98:99]")
    a("s_waitcnt lgkmcnt(0)"); a.lg_done = a.lg_issued
    a(f"s_mov_b32 s{76+i}, s98")
def stamp_init(a):
    if not C.stamps: return
    for i in range(1, NST): a(f"s_mov_b32 s{76+i}, 0")
    stamp(a, 0)
def stamp_flush(a, last, vb):
    if not C.stamps: return
    a("s_waitcnt vmcnt(0)")
    stamp(a, last)
    a("s_mov_b64 exec, 1")
    if C.dbg is not None:
        L = label("DBG")
        a(f"s_cmp_lg_u32 s2, {C.dbg}")
        a(f"s_cbranch_scc1 {L}")
        a("s_cmp_lg_u32 s36, 0")
        a(f"s_cbranch_scc1 {L}")
        a("s_load_dwordx2 s[96:97], s[0:1], 88")
        a("s_waitcnt lgkmcnt(0)")
        srd(a, 24, 96, 97, 256)
        for i in range(NST):
            a(f"s_sub_u32 s96, s{76+i}, s76")
            a(f"v_mov_b32 v{vb+i}, s96")
        a(f"v_mov_b32 v{vb+16}, 0")
        for j in range(4):
            a(f"buffer_store_dwordx4 v[{vb+4*j}:{vb+4*j+3}], v{vb+16}, s[24:27], 0 offen offset:{16*j}")
        a(f"{L}:")
        return
    for i in range(NST): a(f"v_mov_b32 v{vb+i}, s{76+i}")
    a("s_lshl_b32 s96, s2, 2")
    a("s_add_u32 s96, s96, s36")
    a("s_lshl_b32 s96, s96, 6")
    a(f"s_add_u32 s96, s96, {STAMP_OFF}")
    a(f"v_mov_b32 v{vb+16}, 0")
    for j in range(4):
        a(f"buffer_store_dwordx4 v[{vb+4*j}:{vb+4*j+3}], v{vb+16}, s[24:27], s96 offen offset:{16*j}")

def srd(a, d, lo, hi, size):
    a(f"s_mov_b32 s{d}, s{lo}")
    a(f"s_mov_b32 s{d+1}, s{hi}")
    a(f"s_mov_b32 s{d+2}, {size}")
    a(f"s_mov_b32 s{d+3}, 0x00020000")

_lab = [0]
def label(p="L"):
    _lab[0] += 1
    return f"{p}_{_lab[0]}"

SPIN = 40000
def poll(a, loads, scnt=97):
    L = label("POLL"); Dn = label("PDONE")
    a(f"s_mov_b32 s{scnt}, {SPIN}")
    a(f"{L}:")
    for vt, va, so, imm in loads:
        a(f"buffer_load_dword v{vt}, v{va}, s[24:27], {so} offen offset:{imm} sc1")
    a("s_waitcnt vmcnt(0)")
    for n, (vt, va, so, imm) in enumerate(loads):
        if n == 0: a(f"v_xor_b32 v{vt}, s3, v{vt}")
        else:
            a(f"v_xor_b32 v{vt}, s3, v{vt}")
            a(f"v_or_b32 v{loads[0][0]}, v{loads[0][0]}, v{vt}")
    a(f"v_cmp_ne_u32 vcc, 0, v{loads[0][0]}")
    a(f"s_cbranch_vccz {Dn}")
    a(f"s_sub_u32 s{scnt}, s{scnt}, 1")
    a(f"s_cbranch_scc0 {L}")
    a(f"{Dn}:")
    a.vm_done = a.vm_issued

def flag_store(a, vt, soff_reg):
    a("s_mov_b64 exec, 1")
    a(f"v_mov_b32 v{vt}, s3")
    a(f"v_mov_b32 v{vt+1}, 0")
    a.vm(f"buffer_store_dword v{vt}, v{vt+1}, s[24:27], s{soff_reg} offen sc1")
    a("s_mov_b64 exec, -1")

def build(a, m, fn):
    out = [f"; @launch grid=({m['grid']},1,1) block=({m['block']},1,1) lds={m['lds']}"]
    out.append('.amdgcn_target "amdgcn-amd-amdhsa--gfx950"\n.text')
    n = NAME + "_kernel"
    errs = check_hazards(a.lines, "k")
    for e in errs: print("HAZARD", e)
    out.append(kernel_header(n) + a.text())
    out.append('.section .rodata,"a"')
    out.append(kernel_desc(n, m["vgpr"], 102, m.get("accum")))
    open(fn, "w").write("\n".join(out))
```

```python
from common import *
from pa import *

G1_CS = 0
G1_STX = 2560
ACC = 8
XV = 136
VW = 168
AA = 171
VC = 180
MEAN = 182
DA = 186
VH8 = 189
VFL = 190
VT = 192
AR = 196
CSR = 228
ET = 244
VSP = 252
VWH = 252
NR = 8
SM0, SWF, SWH = 40, 41, 42
SKQ, SCQ, SRB, SODD, SFL = 43, 44, 45, 46, 47
SX, SD_, SHS, SHH, SHL = 48, 49, 50, 62, 63
SFLH, SFLHO, STMP = 65, 66, 67
SSP, SP = 30, 31
SHT = 67

def setup_early(a):
    a(f"s_lshr_b32 s{SKQ}, s28, 1")
    a(f"s_and_b32 s{SCQ}, s29, 3")
    a(f"s_and_b32 s{SRB}, s28, 1")
    a(f"s_lshl_b32 s{SRB}, s{SRB}, 3")
    a("s_lshr_b32 s73, s29, 2")
    a(f"s_add_u32 s{SRB}, s{SRB}, s73")
    a(f"s_and_b32 s{SODD}, s29, 1")
    a(f"s_lshl_b32 s73, s{SKQ}, 2")
    a(f"s_add_u32 s73, s73, s{SCQ}")
    a("s_mul_i32 s73, s73, 288")
    a(f"s_and_b32 s{SFL}, s73, 0xffffffc0")
    a("s_and_b32 s73, s36, 1")
    a(f"s_mul_i32 s73, s73, {48*9216}")
    a(f"s_lshl_b32 s74, s{SODD}, 6")
    a(f"s_add_u32 s74, s74, s{SFL}")
    a(f"s_lshl_b32 s{SWF}, s74, 1")
    a(f"s_add_u32 s{SWF}, s{SWF}, s73")
    a(f"s_cmp_eq_u32 s{SODD}, 0")
    a("s_cselect_b32 s74, 256, 32")
    a(f"s_add_u32 s74, s74, s{SFL}")
    a("s_add_u32 s74, s74, s73")
    a(f"s_lshl_b32 s{SWH}, s74, 1")
    a(f"s_mul_i32 s{SM0}, s36, 6144")
    a(f"s_add_u32 s{SM0}, s{SM0}, {RING}")
    a("s_cmp_lt_u32 s36, 2")
    a(f"s_cselect_b32 s8, s{PWG}, s{PWU}")
    a(f"s_cselect_b32 s9, s{PWG+1}, s{PWU+1}")
    a(f"s_mov_b32 s10, {D*F*2}")
    a("s_mov_b32 s11, 0x00020000")
    a(f"v_lshrrev_b32 v{VT}, 3, v2")
    a(f"v_mul_u32_u24 v{VT}, 9216, v{VT}")
    a(f"v_bfe_u32 v{VT+1}, v2, 1, 2")
    a(f"v_lshrrev_b32 v{VT+2}, 4, v2")
    a(f"v_xor_b32 v{VT+1}, v{VT+1}, v{VT+2}")
    a(f"v_lshl_add_u32 v{VT}, v{VT+1}, 5, v{VT}")
    a(f"v_and_b32 v{VT+1}, 1, v2")
    a(f"v_lshl_add_u32 v{VW}, v{VT+1}, 4, v{VT}")
    a(f"v_add_u32 v{VW+1}, {8*9216-1024}, v{VW}")
    a(f"v_add_u32 v{VW+2}, {2*(8*9216-1024)}, v{VW}")

def wdma(a, g, c, sl, n):
    b, u = n // 3, n % 3
    if u == 0:
        a(f"s_add_u32 m0, s{SM0}, {sl*SLOT + 3072*b}")
        if g < 4: a(f"s_add_u32 s75, s{SWF}, {(96*c + 24*b)*9216 + g*128}")
        else: a(f"s_add_u32 s75, s{SWH}, {(192*c + 48*b)*9216}")
    return a.vm(f"buffer_load_dwordx4 v{(VW if g < 4 else VWH)+u}, s[8:11], s75 offen offset:{1024*u} lds")

B1 = ACC + 64
VX = B1
XA = B1 + 2
VSW = B1 + 14
VSR = 255
VSW2 = VT + 3
VCS = B1 + 15
VCW = B1 + 16
VP = B1 + 17
CT = B1 + 24
VTX = B1 + 40
ONES = ET

def setup_late(a):
    a(f"s_and_b32 s{SSP}, s36, 1")
    a(f"s_lshr_b32 s{SP}, s36, 1")
    t0, t1, t2, t3 = VT, VT + 1, VT + 2, VT + 3
    a(f"v_lshrrev_b32 v{t0}, 4, v2")
    a(f"v_bfe_u32 v{t1}, v2, 1, 3")
    a(f"v_xor_b32 v{t1}, v{t1}, v{t0}")
    a(f"v_and_b32 v{t2}, 1, v2")
    a(f"v_lshlrev_b32 v{t2}, 4, v{t2}")
    a(f"v_lshl_add_u32 v{t2}, v{t0}, 12, v{t2}")
    a(f"v_lshl_add_u32 v{VX}, v{t1}, 5, v{t2}")
    a(f"v_xor_b32 v{t1}, 4, v{t1}")
    a(f"v_lshl_add_u32 v{VX+1}, v{t1}, 5, v{t2}")
    a(f"v_add_u32 v{VX+1}, {4*4096-1024}, v{VX+1}")
    a(f"s_mul_i32 s{SX}, s36, {24*4096}")
    a(f"s_lshl_b32 s73, s{SRB}, 8")
    a(f"s_add_u32 s{SX}, s{SX}, s73")
    a(f"s_add_u32 s{SX}, s{SX}, {HT_OFF}")
    a(f"v_mul_u32_u24 v{VP}, {C.fs1}, v2")
    a(f"v_min_u32 v{VP+1}, 15, v2")
    a(f"v_add_u32 v{VP+1}, 128, v{VP+1}")
    a(f"v_mul_u32_u24 v{VP+1}, {C.fs1}, v{VP+1}")
    a(f"v_add_u32 v{VP+2}, {64*C.fs1}, v{VP}")
    a(f"v_lshrrev_b32 v{t1}, 2, v2")
    a(f"v_and_b32 v{t2}, 3, v2")
    a(f"v_lshlrev_b32 v{t2}, 3, v{t2}")
    a(f"v_lshl_add_u32 v{t3}, v{t1}, 7, v{t2}")
    a(f"v_add_u32 v{t3}, {RING}, v{t3}")
    a(f"v_bfe_u32 v5, v2, 3, 2")
    a(f"s_lshl_b32 s70, s{SP}, 1")
    a("s_add_u32 s71, s70, 1")
    a(f"s_lshl_b32 s72, s{SODD}, 1")
    a(f"s_add_u32 s72, s72, s{SP}")
    for u in range(3):
        if u == 2:
            a(f"v_lshl_add_u32 v{t3}, v{t1}, 6, v{t2}")
            a(f"v_add_u32 v{t3}, {RING}, v{t3}")
            a(f"v_bfe_u32 v5, v2, 4, 1")
        a(f"v_xor_b32 v6, s{(70, 71, SP)[u]}, v5")
        a(f"v_lshl_add_u32 v{AA+3*u}, v6, 5, v{t3}")
        a(f"v_add_u32 v{AA+3*u+1}, {2*SLOT}, v{AA+3*u}")
        a(f"v_add_u32 v{AA+3*u+2}, {4*SLOT}, v{AA+3*u}")
    a(f"v_bfe_u32 v6, v2, 1, 1")
    a(f"v_xor_b32 v6, v6, v5")
    a(f"v_mul_u32_u24 v7, 9216, v{t1}")
    a(f"v_lshl_add_u32 v7, v6, 5, v7")
    a(f"v_and_b32 v6, 1, v2")
    a(f"v_lshl_add_u32 v{VWH}, v6, 4, v7")
    a(f"v_add_u32 v{VWH+1}, {16*9216-1024}, v{VWH}")
    a(f"v_add_u32 v{VWH+2}, {2*(16*9216-1024)}, v{VWH}")
    a(f"v_lshl_add_u32 v{t3}, v{t1}, 8, v{t2}")
    a(f"v_add_u32 v{t3}, {RING}, v{t3}")
    a(f"v_and_b32 v5, 7, v{t1}")
    a(f"s_lshl_b32 s73, s{SSP}, 2")
    a(f"s_add_u32 s73, s73, s70")
    for t in range(4):
        a(f"s_xor_b32 s74, s73, {t}")
        a(f"v_xor_b32 v6, s74, v5")
        a(f"v_lshl_add_u32 v{XA+3*t}, v6, 5, v{t3}")
        a(f"v_add_u32 v{XA+3*t+1}, {2*SLOT}, v{XA+3*t}")
        a(f"v_add_u32 v{XA+3*t+2}, {4*SLOT}, v{XA+3*t}")
        a(f"s_lshl_b32 s{SHS+t}, s{SRB}, 3")
        a(f"s_add_u32 s{SHS+t}, s{SHS+t}, s74")
        a(f"s_mul_i32 s{SHS+t}, s{SHS+t}, 147456")
    a(f"s_lshr_b32 s74, s{SFL}, 5")
    a(f"s_add_u32 s74, s74, s72")
    a("s_lshl_b32 s74, s74, 10")
    a(f"s_add_u32 s74, s74, {HH_OFF}")
    for t in range(4): a(f"s_add_u32 s{SHS+t}, s{SHS+t}, s74")
    a(f"s_cmp_eq_u32 s{SODD}, 0")
    a(f"s_cselect_b32 s{SHH}, 8, 1")
    a(f"s_sub_u32 s{SHH}, s{SHH}, s72")
    a(f"s_lshl_b32 s{SHH}, s{SHH}, 10")
    a(f"s_lshl_b32 s74, s{SP}, 3")
    a(f"v_add_u32 v{VH8}, s74, v3")
    a(f"s_lshl_b32 s74, s{SODD}, 8")
    a(f"s_lshl_b32 s75, s{SP}, 7")
    a("s_add_u32 s74, s74, s75")
    a(f"s_add_u32 s74, s74, {G1_CS}")
    a(f"v_lshl_add_u32 v{VC}, v{t0}, 4, s74")
    a(f"s_cmp_eq_u32 s{SODD}, 0")
    a("s_cselect_b32 s74, 1024, 0")
    a("s_lshl_b32 s75, s72, 6")
    a("s_add_u32 s74, s74, s75")
    a(f"s_add_u32 s74, s74, {G1_CS}")
    a(f"v_lshl_add_u32 v{VC+1}, v{t0}, 4, s74")
    a("v_cmp_le_u32 vcc, 80, v0")
    a(f"v_lshlrev_b32 v{VCW}, 4, v0")
    a(f"v_mov_b32 v5, {4608*4 - 80*16}")
    a("v_cndmask_b32 v5, 0, v5, vcc")
    a(f"v_add_u32 v5, v5, v{VCW}")
    a("v_cmp_le_u32 vcc, 160, v0")
    a("v_mov_b32 v6, 0x7ffffff0")
    a(f"v_mov_b32 v7, {G1_STX + 1024 + 1024}")
    a(f"v_cndmask_b32 v{VCS}, v5, v6, vcc")
    a(f"v_add_u32 v{VCW}, {G1_CS}, v{VCW}")
    a(f"v_cndmask_b32 v{VCW}, v{VCW}, v7, vcc")
    a("v_and_b32 v5, 15, v2")
    a("s_lshl_b32 s74, s73, 7")
    a(f"s_add_u32 s74, s74, {G1_STX}")
    a(f"v_lshl_add_u32 v6, v5, 3, s74")
    a("s_xor_b32 s74, s74, 256")
    a(f"v_lshl_add_u32 v{VSR}, v5, 3, s74")
    a("v_lshrrev_b32 v7, 2, v5")
    a(f"v_cmp_eq_u32 vcc, v7, v{t0}")
    a(f"v_lshlrev_b32 v7, 3, v2")
    a(f"v_add_u32 v7, {G1_STX + 1024}, v7")
    a(f"v_cndmask_b32 v{VSW}, v7, v6, vcc")
    a("v_and_b32 v7, 1, v2")
    a("v_cmp_ne_u32 s[32:33], 0, v7")
    a("v_and_b32 v7, 2, v2")
    a("v_cmp_ne_u32 s[34:35], 0, v7")
    for i in range(4): a(f"v_mov_b32 v{ONES+i}, 0x3f803f80")
    a(f"v_add_u32 v{DA}, {RING}, v3")
    a(f"v_add_u32 v{DA+1}, {RING + 2*SLOT}, v3")
    a(f"v_add_u32 v{DA+2}, {RING + 4*SLOT}, v3")
    a(f"s_lshl_b32 s74, s{SKQ}, 2")
    a(f"s_add_u32 s74, s74, s{SCQ}")
    a(f"s_mul_i32 s{SD_}, s74, {324*1024}")
    a("s_mul_i32 s75, s36, 6144")
    a(f"s_add_u32 s{SD_}, s{SD_}, s75")
    a(f"s_add_u32 s{SD_}, s{SD_}, {WD_OFF}")
    a(f"s_lshl_b32 s74, s{SRB}, 3")
    a("s_lshl_b32 s75, s36, 1")
    a("s_add_u32 s74, s74, s75")
    a("s_mul_i32 s74, s74, 144")
    a(f"s_mul_i32 s75, s{SKQ}, 36")
    a("s_add_u32 s74, s74, s75")
    a("s_lshl_b32 s74, s74, 10")
    a(f"s_add_u32 s{SHL}, s74, {HH_OFF}")
    a(f"s_add_u32 s{SHL+1}, s{SHL}, 147456")
    a(f"s_lshl_b32 s74, s{SRB}, 2")
    a(f"s_add_u32 s74, s74, s{SKQ}")
    a("s_lshl_b32 s74, s74, 10")
    a(f"s_add_u32 s{SFLH}, s74, {FLA}")
    a(f"s_lshl_b32 s74, s{SCQ}, 8")
    a(f"s_add_u32 s{SFLHO}, s{SFLH}, s74")
    a(f"v_lshlrev_b32 v{VFL}, 5, v{t2}")
    a(f"v_lshlrev_b32 v{VFL+1}, 3, v{t2}")

def xreg(i):
    return ("a", 4 * i) if i < 64 else ("v", XV + 4 * (i - 64))
def rr(f, r, n=4): return f"{f}[{r}:{r+n-1}]"

def kap_fb(kap):
    if 16 <= kap < 20: i4, jp = kap - 16, 8
    else:
        k2 = kap if kap < 16 else kap - 4
        g, i4, lo = k2 // 8, (k2 % 8) // 2, k2 % 2; jp = 2 * g + lo
    j = (jp + 1) % 9 if i4 % 2 else jp
    return 9 * i4 + j

ORDER = [0, 1, 4, 2, 3]
WST = [(g, c) for g in ORDER for c in range(6 if g < 4 else 3)]
REG = {0: (0, 1), 1: (2, 3), 4: (0,), 2: (1, 2), 3: (3, 0)}
def acc_of(g, ti, t):
    if g == 4: return ACC + 32 * REG[g][0] + 16 * ti + 4 * t
    return ACC + 32 * REG[g][t >> 1] + 8 * ti + 4 * (t & 1)
HB = ACC + 32

def g2_order():
    a_ = C.ka
    o = [(k, z) for k in range(a_) for z in range(7)]
    o += [(k, z) for k in range(a_, 36) for z in range(5)]
    o += [(k, z) for k in range(a_, 36) for z in (5, 6)]
    o += [(k, z) for k in range(36) for z in (7, 8)]
    return o

def ffn(a, slow):
    DSC = "" if "dplain" in C.abl else "sc1"
    HSC = "" if "hplain" in C.abl else "sc1"
    hi = []; lo = []
    def add(at, fn): hi.append((at, len(hi), fn))
    def addlo(at, fn): lo.append((at, fn))
    ltok = {}; slot = {("X", 0): 0, ("X", 1): 1, ("X", 2): 2, ("W", 2): 3, ("W", 0): 4, ("W", 1): 5}
    NULL = Tok("vm", 0)
    ltok[("W", 0)] = ltok[("W", 1)] = NULL
    def dma(ld, n):
        k, s = ld; sl = slot[ld]
        if k == "W" and s >= 10 and "now" in C.abl: t = NULL
        elif k == "W": t = wdma(a, *WST[s], sl, n)
        elif k == "X":
            b, u = n // 2, n % 2
            if u == 0:
                a(f"s_add_u32 m0, s{SM0}, {sl*SLOT + 2048*b}")
                a(f"s_add_u32 s75, s{SX}, {(96*s + 8*b)*4096}")
            t = a.vm(f"buffer_load_dwordx4 v{VX+u}, s[24:27], s75 offen offset:{1024*u} sc1 lds")
        else:
            if s == 13:
                if n == 0:
                    a("s_mul_i32 s74, s36, 3072")
                    a(f"s_add_u32 m0, s74, {RING + sl*SLOT}")
                    a(f"s_sub_u32 s75, s{SD_}, s74")
                    a(f"s_add_u32 s75, s75, {s*SLOT}")
                t = a.vm(f"buffer_load_dwordx4 v3, s[24:27], s75 offen offset:{1024*n} {DSC} lds")
            else:
                b, u = n // 3, n % 3
                if u == 0:
                    a(f"s_add_u32 m0, s{SM0}, {sl*SLOT + 3072*b}")
                    a(f"s_add_u32 s75, s{SD_}, {s*SLOT + 3072*b}")
                if "nod" in C.abl: t = NULL
                else: t = a.vm(f"buffer_load_dwordx4 v3, s[24:27], s75 offen offset:{1024*u} {DSC} lds")
        ltok[ld] = t
    def ndma(ld): return 3 if ld == ("D", 13) else 6
    a("s_waitcnt vmcnt(0)")
    a.vm_issued = a.vm_done = 0
    a("s_barrier")
    stamp(a, 7)
    a("s_cmp_lg_u32 s36, 0")
    a("s_cbranch_scc1 F_j1")
    a(f"s_mul_i32 s74, s2, {C.fs1}")
    a(f"s_add_u32 s74, s74, {FL1}")
    flag_store(a, VT, 74)
    a("s_cmp_lg_u32 s2, 0")
    a("s_cbranch_scc1 F_j1")
    a(f"s_mov_b32 s74, {EP_OFF}")
    flag_store(a, VT, 74)
    a("F_j1:")
    a.vm_issued = a.vm_done = 0
    if C.stop == "p1": return
    for n in range(6): dma(("W", 2), n)
    a("s_cmp_lg_u32 s36, 0")
    a("s_cbranch_scc1 F_j2")
    a(f"s_mov_b32 s74, {FL1}")
    sv = a.vm_done
    poll(a, [(VP + 3, VP, "s74", 0), (VP + 4, VP + 2, "s74", 0), (VP + 5, VP + 1, "s74", 0)])
    a.vm_done = sv
    a("F_j2:")
    a("s_barrier")
    stamp(a, 8)
    for c in range(3):
        for n in range(6): dma(("X", c), n)
    mf = []
    frags = []
    Mg = {}; Mst = {}
    for si, (g, c) in enumerate(WST):
        if c == 0: Mg[g] = len(mf)
        Mst[("W", si)] = len(mf)
        nk = 3 if g < 4 else 6
        for kl in range(nk):
            ks = nk * c + kl
            tiles = [(0, 0), (0, 1), (1, 0), (1, 1)] if g < 4 else [(0, 2), (1, 2)]
            for ti, (mat, u) in enumerate(tiles):
                n = len(frags)
                frags.append((("W", si), mat * 12288 + kl * (4096 if g < 4 else 2048), AA + 3 * u, "tr" if g < 4 else "trh", len(mf)))
                for t in range(4):
                    mf.append((("v", acc_of(g, ti, t)), ("v", AR + 4 * (n % NR)), xreg(4 * ks + t), ks == 0, [("f", n), ("x", 4 * ks + t)]))
            if g == 0:
                for t in range(2): mf.append((("v", CSR + 4 * t), ("v", ONES), xreg(4 * ks + t), ks == 0, []))
                for t in range(2): mf.append((("v", CSR + 8 + 4 * t), xreg(4 * ks + t), xreg(4 * ks + t), ks == 0, []))
    M5 = len(mf)
    hreg = xreg
    A2 = ACC + 96
    def acc2(z, st): return HB + 8 * z + 4 * st if z < 7 else A2 + 8 * st + 4 * (z - 7)
    huse = {}
    if C.stop != "g1":
        for nd, (kap, z) in enumerate(g2_order()):
            n = len(frags)
            if nd % 24 == 0: Mst[("D", nd // 24)] = len(mf)
            if (kap, z) == (C.ka, 5): MS3 = len(mf)
            if (kap, z) == (0, 7): M6 = len(mf)
            huse.setdefault(kap, len(mf))
            frags.append((("D", nd // 24), (nd % 24) * 1024, DA, "lin", len(mf)))
            for st in range(2):
                mf.append((("v", acc2(z, st)), ("v", AR + 4 * (n % NR)), hreg(2 * kap + st), kap == 0, [("f", n | 1), ("h", 2 * kap + 1)]))
    NM = len(mf)
    tok = {}
    lastread = {}
    W = lambda s: ("W", s); X = lambda s: ("X", s)
    bars = [(-100, [X(0), W(0), W(1), W(2)], []), (12, [X(1)], [X(0)]), (36, [X(2)], [X(1)]), (64, [], [X(2), W(0)]),
            (100, [X(3)], []), (124, [W(3)], [X(3), W(1)]), (160, [X(4), W(4)], []), (184, [], [X(4), W(2)]),
            (220, [X(5), W(5)], []), (244, [], [X(5), W(3)])]
    seq = [W(s) for s in range(len(WST))] + ([("D", s) for s in range(14)] if C.stop != "g1" else [])
    for i in range(6, len(seq)):
        bars.append((Mst[seq[i]] - 18, [seq[i]], [seq[i - 2]]))
    queue = [X(3), W(3), X(4), W(4), X(5), W(5)] + seq[6:]
    opened = {}
    freel = []
    extra_wait = {}
    post = {}
    for bi, (pos, opens, frees) in enumerate(bars):
        for o in opens: opened[o] = pos
        def mk(bi=bi, opens=opens, frees=frees):
            def f():
                toks = [ltok[o] for o in opens] + [lastread[x] for x in frees] + [fn() for fn in extra_wait.get(bi, [])]
                a.wait(*toks)
                if not ("nobar" in C.abl and bi > 12): a("s_barrier")
                if bi in post: post[bi]()
            return f
        add(pos, mk())
        nxt = bars[bi + 1][0] if bi + 1 < len(bars) else pos + 40
        todo = []
        freel.extend(slot[fr] for fr in frees)
        for _ in range(max(1, len(frees))):
            if queue and freel and pos >= Mst.get(queue[0], 0) - 18 - 48 * C.maxlead.get(queue[0], 99):
                ld = queue.pop(0); slot[ld] = freel.pop(0)
                todo += [(ld, n) for n in range(ndma(ld))]
        span = min(nxt - pos - 2, 42)
        for k, (ld, n) in enumerate(todo):
            add(pos + 1.5 + k * span / len(todo), (lambda ld=ld, n=n: dma(ld, n)))
    assert not queue
    def bar_after(p):
        for bi, b in enumerate(bars):
            if b[0] >= p: return bi
    for n, (ld, off, areg, kind, m0_) in enumerate(frags):
        r = AR + 4 * (n % NR)
        la = 4 if kind != "lin" else 6
        at = frags[n - la][4] if n >= la else -50 + n
        if n >= NR: at = max(at, frags[n - NR + 1][4])
        at = max(at, opened[ld] + 0.1)
        def mk(n=n, ld=ld, off=off, areg=areg, kind=kind, r=r, h=0):
            def f():
                sl = slot[ld]
                o = (sl % 2) * SLOT + off
                if "nord" in C.abl and n > 80: t = Tok("lg", 0)
                elif kind != "lin": t = a.lg(f"ds_read_b64_tr_b16 v[{r+2*h}:{r+2*h+1}], v{areg + sl//2} offset:{o + (2048 if kind == 'tr' else 1024)*h}")
                else: t = a.lg(f"ds_read_b128 v[{r}:{r+3}], v{areg + sl//2} offset:{o}")
                tok[("f", n)] = t; lastread[ld] = t
            return f
        add(at + 0.2, mk())
        if kind != "lin": add(at + (1.2 if at >= 0 else 0.3), mk(h=1))
    for c in range(6):
        k = 0
        for kl in range(3):
            for t in range(4):
                for h in range(2):
                    i = 4 * (3 * c + kl) + t
                    def mk(c=c, kl=kl, t=t, h=h, i=i):
                        def f():
                            sl = slot[X(c)]
                            f_, r = xreg(i)
                            tk = a.lg(f"ds_read_b64_tr_b16 {f_}[{r+2*h}:{r+2*h+1}], v{XA + 3*t + sl//2} offset:{(sl%2)*SLOT + kl*8192 + 4096*h}")
                            tok[("x", i)] = tk; lastread[X(c)] = tk
                        return f
                    if c == 0: at = -60 + k if k < 8 else (k - 8) * 0.6
                    else: at = opened[X(c)] + 0.5 + k * 0.8
                    add(at, mk()); k += 1
    def check(loads, tk):
        S_ = label("SLOW"); B_ = label("BACK")
        a.wait(tk)
        if len(loads) == 1:
            a(f"v_cmp_ne_u32 vcc, s3, v{loads[0][0]}")
        else:
            for vt, *_ in loads: a(f"v_xor_b32 v{vt}, s3, v{vt}")
            a(f"v_or_b32 v{loads[0][0]}, v{loads[0][0]}, v{loads[1][0]}")
            a(f"v_cmp_ne_u32 vcc, 0, v{loads[0][0]}")
        a(f"s_cbranch_vccnz {S_}")
        a(f"{B_}:")
        slow(f"{S_}:")
        poll(slow, loads)
        slow(f"s_branch {B_}")
    def flagload(loads, key):
        def f():
            for vt, va, so, imm in loads:
                tok[key] = a.vm(f"buffer_load_dword v{vt}, v{va}, s[24:27], {so} offen offset:{imm} sc1")
        return f
    hl = [(VP + 3, VP, "s68", 0), (VP + 4, VP, "s69", 0)]
    def hl_set():
        a(f"s_mov_b32 s68, {FL1 + 144*C.fs1}")
        a(f"s_mov_b32 s69, {FL1 + 192*C.fs1}")
    add(104, hl_set); add(105, flagload(hl, "hl"))
    add(200, lambda: check(hl, tok["hl"]))
    for j in range(4):
        def f(j=j):
            if j == 0: a(f"s_lshl_b32 s74, s{SFL}, 2")
            a(f"s_add_u32 s74, s74, {CS_OFF if j == 0 else 2*F*4}")
            tok["cs"] = a.vm(f"buffer_load_dwordx4 v[{CT+4*j}:{CT+4*j+3}], v{VCS}, s[24:27], s74 offen sc1")
        add(202.6 + 0.01 * j, f)
    for j in range(4):
        def f(j=j):
            a.wait(tok["cs"])
            a(f"v_add_f32 v{CT+j}, v{CT+j}, v{CT+4+j}")
            a(f"v_add_f32 v{CT+8+j}, v{CT+8+j}, v{CT+12+j}")
            a(f"v_add_f32 v{CT+j}, v{CT+j}, v{CT+8+j}")
        add(300.6 + 2 * j, f)
    def f(): tok["csw"] = a.lg(f"ds_write_b128 v{VCW}, v[{CT}:{CT+3}]")
    add(310.6, f)
    extra_wait.setdefault(bar_after(320), []).append(lambda: tok["csw"])
    add(330.6, lambda: a(f"v_mov_b32 v{VSW2}, v{VSW}"))
    M1 = Mg[1]
    fin = []
    for t in range(2):
        sm, gr = CSR + 4 * t, CSR + 8 + 4 * t
        fin.append(f"v_cndmask_b32 v{gr}, v{gr}, v{gr+1}, s[32:33]")
        fin.append(f"v_cndmask_b32 v{gr+2}, v{gr+2}, v{gr+3}, s[32:33]")
        fin.append(f"v_mul_f32 v{sm}, {-1.0/576!r}, v{sm}")
        fin.append(f"v_cndmask_b32 v{gr}, v{gr}, v{gr+2}, s[34:35]")
        fin.append(f"v_mov_b32 v{MEAN+t}, v{sm}")
        fin.append(f"v_mul_f32 v{gr}, {1.0/576!r}, v{gr}")
        fin.append(f"v_fma_f32 v{gr}, -v{sm}, v{sm}, v{gr}")
        fin.append(f"v_max_f32 v{gr}, 0, v{gr}")
        fin.append(f"v_add_f32 v{gr}, 0x3727c5ac, v{gr}")
        fin.append(f"v_rcp_f32 v{sm+1}, v{gr}")
    for i, s_ in enumerate(fin): add(M1 + 5.6 + i, (lambda s_=s_: a(s_)))
    for t in range(2):
        def f(t=t): tok["stw"] = a.lg(f"ds_write_b64 v{VSW2}, v[{CSR+4*t}:{CSR+4*t+1}] offset:{128*t}")
        add(M1 + 27.6 + 0.1 * t, f)
    bi = bar_after(M1 + 29)
    extra_wait.setdefault(bi, []).append(lambda: tok["stw"])
    for t in range(2):
        def f(t=t): tok["str"] = a.lg(f"ds_read_b32 v{MEAN+2+t}, v{VSR} offset:{128*t}")
        add(bars[bi][0] + 2.6 + t, f)
    ep0_start = bars[bi][0] + 5
    def ep_items(g):
        items = []
        nt = 2 if g < 4 else 1
        for j in range(2 * nt):
            def f(j=j):
                if g < 4: base, off = VC, g * 256 + (j % 2) * 64 + (j // 2) * 1280
                else: base, off = VC + 1, j * 1280
                tok[("c", g)] = a.lg(f"ds_read_b128 v[{CSR+4*j}:{CSR+4*j+3}], v{base} offset:{off}")
            items.append(f)
        for t in range(4):
            A_ = [acc_of(g, j, t) for j in range(2 * nt)]
            o = ET + 4 * (t % 2)
            def mk(s_, w=False):
                def f():
                    if "noep" in C.abl: return
                    if w: a.wait(tok[("c", g)], tok["str"])
                    a(s_)
                return f
            for j in range(2 * nt):
                for r in range(4): items.append(mk(f"v_fmac_f32 v{A_[j]+r}, v{MEAN+t}, v{CSR+4*j+r}", True))
            for j in range(nt):
                for r in range(4): items.append(mk(f"v_max_f32 v{A_[j]+r}, 0, v{A_[j]+r}"))
            for j in range(nt):
                for r in range(4): items.append(mk(f"v_mul_f32 v{A_[j]+r}, v{A_[j]+r}, v{A_[j+nt]+r}"))
            for j in range(nt):
                for r in range(2): items.append(mk(f"v_cvt_pk_bf16_f32 v{o+2*j+r}, v{A_[j]+2*r}, v{A_[j]+2*r+1}"))
            def st(t=t, o=o):
                if g < 4:
                    if g == 2: a(f"s_add_u32 s{SHS+t}, s{SHS+t}, 4096")
                    tk = a.vm(f"buffer_store_dwordx4 v[{o}:{o+3}], v3, s[24:27], s{SHS+t} offen offset:{(g%2)*2048} sc1")
                else:
                    a(f"s_add_u32 s72, s{SHS+t}, s{SHH}")
                    tk = a.vm(f"buffer_store_dwordx2 v[{o}:{o+1}], v{VH8}, s[24:27], s72 offen sc1")
                tok[("hs", g, t)] = tk
                eppos[(g, t)] = cur[0]
            items.append(st)
        return items
    eppos = {}; cur = [0]
    Mend = {g: (Mg[ORDER[i + 1]] if i < 4 else M5) for i, g in enumerate(ORDER)}
    for g in ORDER:
        st0 = ep0_start if g == 0 else Mend[g] + 3
        for i, it in enumerate(ep_items(g)): addlo(st0 + (0 if i < 4 else 4), it)
    def publish(level):
        def f():
            L = label("PUB")
            a("s_cmp_lg_u32 s36, 0")
            a(f"s_cbranch_scc1 {L}")
            a("s_mov_b64 exec, 1")
            a(f"v_mov_b32 v{VT}, s3")
            a(f"buffer_store_dword v{VT}, v4, s[24:27], s{SFLHO} offen offset:{64*level} sc1")
            a("s_mov_b64 exec, -1")
            a(f"{L}:")
        return f
    if C.stop != "g1":
        M2, M3 = Mg[2], Mg[3]
        for level, (g, p) in enumerate([(4, M2 + 200), (2, M3 + 200), (3, M5 + C.pub3)]):
            bi = bar_after(p)
            extra_wait.setdefault(bi, []).append(lambda g=g: tok[("hs", g, 3)])
            post[bi] = publish(level)
            print("publish", level, "at", bars[bi][0] - M5)
        hat = [M3 + 17 + C.hsp * h if h < 56 else M5 + C.late0 + C.hsp2 * (h - 56) for h in range(72)]
        for level, h0 in enumerate((0, 40, 56)):
            hl2 = [(VT + 1, VFL, f"s{SFLH}", 64 * level)]
            add(int(hat[h0]) - 40.4, flagload(hl2, ("hf", level)))
            add(int(hat[h0]) - 1.4, (lambda hl2=hl2, level=level: check(hl2, tok[("hf", level)])))
        for h in range(72):
            kap, st = h // 2, h % 2
            at = int(hat[h]) + 0.7
            assert at > M3 + 16 * (h // 4 + 1)
            if st and kap % 4 == 3 or kap == 28: print(kap, 'lead', int(huse[kap] - at), end='; ')
            def f(h=h, kap=kap, st=st):
                fb = kap_fb(kap)
                f_, r = hreg(h)
                a(f"s_add_u32 s73, s{SHL+st}, {fb*1024}")
                if "noh" in C.abl: tok[("h", h)] = NULL
                else: tok[("h", h)] = a.vm(f"buffer_load_dwordx4 {f_}[{r}:{r+3}], v3, s[24:27], s73 offen {HSC}")
            add(at, f)
        HR = CSR
        VR1, VR2, R2, VO, VM, VB = AA, AA + 1, AA + 2, AA + 4, AA + 6, AA + 7
        Y = HB
        RB = [ACC, ACC + 16, ACC + 112]
        P0_ = M5 + C.misc0
        def spread(p, txt, guard=None):
            for i, l_ in enumerate(txt.strip().split("\n")):
                def f(l_=l_.strip()):
                    if guard: assert guard in tok
                    if l_.startswith("ds_"): tok["r2"] = a.lg(l_)
                    else: a(l_)
                addlo(p, f)
        spread(P0_, f"""
            s_lshl_b32 s68, s{SRB}, 2
            s_add_u32 s68, s68, s{SCQ}
            s_lshl_b32 s69, s68, 2
            s_add_u32 s69, s69, s36
            s_lshl_b32 s69, s69, 13
            s_add_u32 s69, s69, {PY_OFF}
            s_mul_i32 s68, s68, 196608
            s_lshl_b32 s71, s36, 12
            s_add_u32 s68, s68, s71
            s_add_u32 s68, s68, {PX_OFF}
            s_add_u32 s16, s{SKQ}, 1
            s_and_b32 s16, s16, 3
            s_mul_i32 s16, s16, 49152
            s_add_u32 s16, s16, s68
            s_add_u32 s17, s{SKQ}, 2
            s_and_b32 s17, s17, 3
            s_mul_i32 s17, s17, 49152
            s_add_u32 s17, s17, s68
            s_add_u32 s17, s17, 16384
            s_add_u32 s18, s{SKQ}, 3
            s_and_b32 s18, s18, 3
            s_mul_i32 s18, s18, 49152
            s_add_u32 s18, s18, s68
            s_add_u32 s18, s18, 32768
            s_sub_u32 s19, s{SKQ}, s36
            s_and_b32 s19, s19, 3
            s_lshl_b32 s19, s19, 11
            s_add_u32 s19, s19, s69
            s_mul_i32 s20, s{SKQ}, 49152
            s_add_u32 s20, s20, s68
            s_add_u32 s21, s20, 16384
            s_add_u32 s22, s20, 32768
            s_add_u32 s23, s69, 4096
            v_mov_b32 v{VM}, 0xff
            v_lshrrev_b32 v5, 4, v2
            v_and_b32 v6, 15, v2
            v_lshlrev_b32 v{VR1}, 1, v6
            v_lshl_add_u32 v{VR2}, v5, 14, v{VR1}
            v_lshl_add_u32 v{VR1}, v5, 15, v{VR1}
            s_mul_i32 s37, s{SCQ}, 144
            s_lshl_b32 s38, s{SKQ}, 5
            s_add_u32 s38, s38, s37
            s_add_u32 s37, s37, 128
            s_lshl_b32 s39, s{SRB}, 7
            s_lshl_b32 s71, s36, 5
            s_add_u32 s39, s39, s71
            s_lshl_b32 s71, s39, 1
            s_add_u32 s71, s71, {HT_OFF}
            s_lshl_b32 s32, s38, 12
            s_add_u32 s32, s32, s71
            s_lshl_b32 s33, s37, 12
            s_add_u32 s33, s33, s71
            v_add_u32 v7, s39, v6
            v_mul_u32_u24 v7, 1152, v7
            s_lshl_b32 s38, s38, 1
            s_lshl_b32 s37, s37, 1
            v_lshl_add_u32 v{VO}, v5, 4, v7
            v_add_u32 v{VO}, s38, v{VO}
            v_lshl_add_u32 v{VO+1}, v5, 3, v7
            v_add_u32 v{VO+1}, s37, v{VO+1}
            s_lshl_b32 s71, s36, 8
            s_add_u32 s71, s71, {G1_STX + 4}
            v_lshl_add_u32 v7, v6, 3, s71
            ds_read_b32 v{R2}, v7
            ds_read_b32 v{R2+1}, v7 offset:128
            s_mov_b32 s12, s{POUT}
            s_mov_b32 s13, s{POUT+1}
            s_mov_b32 s14, {SD_BYTES}
            s_mov_b32 s15, 0x00020000
            s_mov_b32 s34, {16*1152}
            """ + "\n".join(f"v_mov_b32 v{HR+j}, 0" for j in range(24)), ("hs", 3, 3))
        def done_setup(): tok["setup"] = NULL
        addlo(P0_, done_setup)
        for j in range(12):
            for st in range(2):
                def f(j=j, st=st):
                    assert "setup" in tok
                    if j < 8: va, sreg, r = VR1, 32, HR + 8 * st + j
                    else: va, sreg, r = VR2, 33, HR + 16 + 4 * st + j - 8
                    tok["hr"] = a.vm(f"buffer_load_short_d16_hi v{r}, v{va}, s[24:27], s{sreg} offen offset:{32*st} sc1")
                    if st == 1: a(f"s_add_u32 s{sreg}, s{sreg}, 4096")
                add(MS3 + 6.6 + 4 * (2 * j + st), f)
        k1 = k2 = 0
        for z in range(7):
            for st in range(2):
                r = acc2(z, st)
                if z < 5: at = MS3 + 4.6 + C.ssp * k1; k1 += 1
                else: at = M6 + 4.6 + C.ssp * k2; k2 += 1
                def f(r=r):
                    assert "setup" in tok
                    a(f"v_bfi_b32 v{r}, v{VM}, s3, v{r}")
                    a(f"v_bfi_b32 v{r+2}, v{VM}, s3, v{r+2}")
                add(at, f)
                def f(z=z, st=st, r=r):
                    if z == 4: sreg, imm = 19, st * 1024
                    else:
                        zz = z if z < 4 else z - 1
                        sreg, imm = 16 + zz // 2, (2 * st + zz % 2) * 1024
                    a.vm(f"buffer_store_dwordx4 v[{r}:{r+3}], v3, s[24:27], s{sreg} offen offset:{imm} sc1")
                add(at + 1, f)
        def rx(em, e, j): return em(f"buffer_load_dwordx4 v[{RB[e]+4*j}:{RB[e]+4*j+3}], v3, s[24:27], s{20+e} offen offset:{1024*j} sc1")
        def ry(em):
            for sl_ in range(1, 4):
                for st in range(2):
                    r = Y + 8 * (sl_ - 1) + 4 * st
                    em(f"buffer_load_dwordx4 v[{r}:{r+3}], v3, s[24:27], s{69 if sl_ == 1 else 23} offen offset:{(sl_%2)*2048 + st*1024} sc1")
        for e in range(3):
            for j in range(4):
                add((M6 + C.rx1 + 3 * (4 * e + j) if e < 2 else M6 + C.rx2 + 2 * j) + 0.6, (lambda e=e, j=j: rx(a.vm, e, j)))
        def f():
            L = label("RY")
            a(f"s_cmp_lg_u32 s36, s{SKQ}")
            a(f"s_cbranch_scc1 {L}")
            ry(a)
            a(f"{L}:")
        add(M6 + C.rx1 + 25.6, f)
    hi.sort(key=lambda x: (x[0], x[1]))
    hi_i = 0; lo_i = 0
    while hi_i < len(hi) and hi[hi_i][0] < 0:
        hi[hi_i][2](); hi_i += 1
    over = 0
    for m, (d, A, B, first, keys) in enumerate(mf):
        cur[0] = m
        for g, need in {4: [(0, 1)], 2: [(0, 3), (1, 1)], 3: [(1, 3), (4, 3)]}.items():
            if m == Mg[g]:
                for nd_ in need: assert ("hs",) + nd_ in tok, f"epilogue {nd_} not finished at start of {g}"
        if m == M5: assert ("hs", 2, 3) in tok
        a.wait(*[tok[k] for k in keys])
        src = "0" if first else rr(*d)
        a(f"v_mfma_f32_16x16x32_bf16 {rr(*d)}, {rr(*A)}, {rr(*B)}, {src}")
        n0 = len(a.lines)
        while hi_i < len(hi) and hi[hi_i][0] < m + 1:
            hi[hi_i][2](); hi_i += 1
        nxt_wait = 0
        if m + 1 < NM:
            for k in mf[m + 1][4]:
                t = tok[k]
                if (t.kind == "lg" and t.idx > a.lg_done) or (t.kind == "vm" and t.idx > a.vm_done): nxt_wait = 1
        while lo_i < len(lo) and lo[lo_i][0] <= m and len(a.lines) - n0 + nxt_wait < (C.cap3 if M5 <= m < M5 + 150 else 2):
            lo[lo_i][1](); lo_i += 1
        over += max(0, len(a.lines) - n0 + nxt_wait - 2)
        if C.stop != "g1":
            for si_, e_ in enumerate(C.fst):
                if m + 1 == eval(e_): stamp(a, 9 + si_)
    print({k: v - M5 for k, v in eppos.items() if k[1] in (1, 3)}, {g: v - M5 for g, v in Mg.items()})
    print("mfma", NM, "overfull slots", over, "lo left", len(lo) - lo_i)
    assert hi_i == len(hi)
    if lo_i < len(lo): a("s_nop 7")
    while lo_i < len(lo):
        lo[lo_i][1](); lo_i += 1
    if C.stop == "g1": return
    def tagchk(em, regs):
        for i, r in enumerate(regs):
            if i == 0: em(f"v_xor_b32 v{VB}, s3, v{r}")
            else: em(f"v_bitop3_b32 v{VB}, v{VB}, v{r}, s3 bitop3:0xf6")
        em(f"v_and_b32 v{VB}, v{VM}, v{VB}")
        em(f"v_cmp_ne_u32 vcc, 0, v{VB}")
    def guarded(regs, reload):
        S_ = label("XS"); B_ = label("XB"); L_ = label("XL")
        tagchk(a, regs)
        a(f"s_cbranch_vccnz {S_}")
        a(f"{B_}:")
        slow(f"{S_}:")
        slow(f"s_mov_b32 s97, {SPIN}")
        slow(f"{L_}:")
        reload(slow)
        slow("s_waitcnt vmcnt(0)")
        tagchk(slow, regs)
        slow(f"s_cbranch_vccz {B_}")
        slow("s_sub_u32 s97, s97, 1")
        slow(f"s_cbranch_scc0 {L_}")
        slow(f"s_branch {B_}")
    a("s_waitcnt vmcnt(4) lgkmcnt(0)")
    a(f"s_cmp_lg_u32 s36, s{SKQ}")
    a("s_cbranch_scc1 F_n8")
    guarded([Y + 2 * i for i in range(12)], ry)
    O8 = acc2(4, 0)
    for j in range(8):
        a(f"v_add_f32 v{Y+j}, v{Y+j}, v{Y+8+j}")
        a(f"v_add_f32 v{Y+16+j}, v{Y+16+j}, v{O8+j}")
    for j in range(8): a(f"v_add_f32 v{Y+j}, v{Y+j}, v{Y+16+j}")
    for j in range(8): a(f"v_fmac_f32 v{HR+16+j}, v{Y+j}, v{R2+j//4}")
    for j in range(4): a(f"v_cvt_pk_bf16_f32 v{Y+j}, v{HR+16+2*j}, v{HR+17+2*j}")
    a("s_waitcnt vmcnt(0)")
    a(f"buffer_store_dwordx2 v[{Y}:{Y+1}], v{VO+1}, s[12:15], 0 offen")
    a(f"buffer_store_dwordx2 v[{Y+2}:{Y+3}], v{VO+1}, s[12:15], s34 offen")
    a("F_n8:")
    guarded([RB[e] + 2 * i for e in range(2) for i in range(8)], lambda em: [rx(em, e, j) for e in range(2) for j in range(4)])
    for j in range(16): a(f"v_add_f32 v{RB[0]+j}, v{RB[0]+j}, v{RB[1]+j}")
    for j in range(16): a(f"v_add_f32 v{A2+j}, v{A2+j}, v{RB[0]+j}")
    a(f"s_cmp_eq_u32 s36, s{SKQ}")
    a("s_cbranch_scc1 F_j8")
    a("s_waitcnt vmcnt(0)")
    a("F_j8:")
    guarded([RB[2] + 2 * i for i in range(8)], lambda em: [rx(em, 2, j) for j in range(4)])
    for j in range(16): a(f"v_add_f32 v{A2+j}, v{A2+j}, v{RB[2]+j}")
    for j in range(16): a(f"v_fmac_f32 v{HR+j}, v{A2+j}, v{R2+j//8}")
    for j in range(8): a(f"v_cvt_pk_bf16_f32 v{ACC+j}, v{HR+2*j}, v{HR+2*j+1}")
    a(f"buffer_store_dwordx4 v[{ACC}:{ACC+3}], v{VO}, s[12:15], 0 offen")
    a(f"buffer_store_dwordx4 v[{ACC+4}:{ACC+7}], v{VO}, s[12:15], s34 offen")
```

```python
from common import *

KC_STRIDE = 4160
K1_U = 4 * 4 * KC_STRIDE
K1_ST = K1_U + 4 * 4608
K1_LDS = K1_ST + 16384
P0L = K1_LDS
P0S = 10112
RING = 16384
SLOT = 24576
LDS_TOTAL = 163840

PQ, PK, PV, PSH, PSK, PSD, PBX, PWG, PWU, PWD, POUT, PDBG, PWS = range(40, 66, 2)

def prologue(a):
    a("s_cmp_ge_u32 s2, 256")
    a("s_cbranch_scc1 END")
    stamp_init(a)
    a("s_load_dwordx16 s[40:55], s[0:1], 0")
    a("s_load_dwordx8 s[56:63], s[0:1], 64")
    a("s_load_dwordx2 s[64:65], s[0:1], 96")
    a("v_lshrrev_b32 v1, 6, v0")
    a("v_and_b32 v2, 63, v0")
    a("v_readfirstlane_b32 s36, v1")
    a("s_and_b32 s28, s2, 7")
    a("s_lshr_b32 s29, s2, 3")
    a("v_lshlrev_b32 v3, 4, v2")
    a("v_mov_b32 v4, 0")

def khead(a):
    a("s_mul_i32 s34, s28, 18")
    a("s_add_u32 s34, s34, s29")
    a("s_lshl_b32 s34, s34, 2")
    a("s_add_u32 s34, s34, s36")
    a("s_min_u32 s34, s34, 575")
    a("s_lshl_b32 s35, s34, 12")
    srd(a, 12, PSK, PSK + 1, SD_BYTES)
    a("v_lshlrev_b32 v63, 6, v2")
    a.vm("buffer_load_dwordx2 v[60:61], v4, s[12:15], s35 offen")
    a.vm("buffer_load_dword v63, v63, s[12:15], s35 offen")

def kdma(a):
    a(f"s_mul_i32 s30, s36, {4*KC_STRIDE}")
    a("s_add_u32 s66, s35, 2")
    a("s_add_u32 s67, s35, 4")
    a("s_add_u32 s68, s35, 6")
    so = ["s35", "s66", "s67", "s68"]
    for r in range(4):
        a(f"s_add_u32 m0, s30, {r*KC_STRIDE+32}")
        a("s_nop 0")
        for z in range(4):
            a.vm(f"buffer_load_dwordx4 v3, s[12:15], {so[r]} offen offset:{1024*z} lds")
    return 16

def p0_pub(a, n):
    L = label("P0P")
    a(f"s_waitcnt vmcnt({n})")
    a("v_readfirstlane_b32 s3, v62")
    a("s_barrier")
    a("s_add_u32 s3, s3, 1")
    a("s_cmp_lg_u32 s36, 0")
    a(f"s_cbranch_scc1 {L}")
    sv = a.vm_issued
    flag_store(a, 8, 32)
    a.vm_issued = sv
    a(f"{L}:")

def p0(a):
    a("s_and_b32 s30, s29, 3")
    a("s_lshl_b32 s31, s28, 2")
    a("s_add_u32 s30, s30, s31")
    a("s_lshr_b32 s31, s29, 2")
    a("s_lshl_b32 s32, s31, 5")
    a("s_add_u32 s32, s32, s30")
    a(f"s_mul_i32 s32, s32, {C.fs0}")
    a(f"s_add_u32 s32, s32, {FL0}")
    a("s_cmp_eq_u32 s36, 3")
    a("s_cbranch_scc1 P0_st1")
    a("v_mul_u32_u24 v5, 57, v2")
    a("v_lshrrev_b32 v5, 9, v5")
    a("v_mul_u32_u24 v6, 9, v5")
    a("v_sub_u32 v6, v2, v6")
    a(f"s_mul_i32 s33, s30, {64*1152}")
    a("s_mul_i32 s37, s31, 144")
    a("s_add_u32 s33, s33, s37")
    a(f"s_sub_u32 s33, s33, {4*1152}")
    a("v_mul_u32_u24 v5, 1152, v5")
    a("v_lshl_add_u32 v5, v6, 4, v5")
    a("v_add_u32 v10, s33, v5")
    for n in range(1, 10): a(f"v_add_u32 v{10+n}, {7*1152*n}, v10")
    a(f"s_mul_i32 s38, s36, {P0S}")
    a(f"s_add_u32 s38, s38, {P0L}")
    a("s_mul_i32 s37, s31, 72")
    a("s_mul_i32 s39, s36, 24")
    a("s_add_u32 s37, s37, s39")
    a("v_and_b32 v6, 7, v2")
    a("v_add_u32 v6, s37, v6")
    a("v_lshlrev_b32 v7, 3, v6")
    a("s_waitcnt lgkmcnt(0)")
    stamp(a, 1)
    a("s_cmp_eq_u32 s36, 0")
    a(f"s_cselect_b32 s8, s{PK}, s{PV}")
    a(f"s_cselect_b32 s9, s{PK+1}, s{PV+1}")
    a("s_cmp_eq_u32 s36, 2")
    a(f"s_cselect_b32 s8, s{PQ}, s8")
    a(f"s_cselect_b32 s9, s{PQ+1}, s9")
    a(f"s_mov_b32 s10, {SD_BYTES}")
    a("s_mov_b32 s11, 0x00020000")
    for n in range(10):
        a(f"s_add_u32 m0, s38, {1008*n}")
        if n == 0: srd(a, 24, PWS, PWS + 1, WS_BYTES)
        else: a("s_nop 0")
        a.vm(f"buffer_load_dwordx4 v{10+n}, s[8:11], 0 offen lds")
    srd(a, 16, PSH, PSH + 1, D * 8)
    for e in range(3):
        a.vm(f"buffer_load_dwordx2 v[{20+2*e}:{21+2*e}], v7, s[16:19], 0 offen offset:{64*e}")
    a("s_branch P0_j1")
    a("P0_st1:")
    a("v_lshrrev_b32 v5, 3, v2")
    a("s_lshl_b32 s33, s30, 6")
    a("s_lshl_b32 s37, s31, 3")
    a("s_add_u32 s33, s33, s37")
    a("v_add_u32 v5, s33, v5")
    a("v_mul_u32_u24 v6, 1152, v5")
    a("v_and_b32 v7, 7, v2")
    a("v_lshl_add_u32 v6, v7, 4, v6")
    a("s_waitcnt lgkmcnt(0)")
    stamp(a, 1)
    srd(a, 8, PQ, PQ + 1, SD_BYTES)
    srd(a, 24, PWS, PWS + 1, WS_BYTES)
    for j in range(9):
        a.vm(f"buffer_load_dwordx4 v[{12+4*j}:{15+4*j}], v6, s[8:11], 0 offen offset:{128*j}")
    a("P0_j1:")
    a(f"s_mov_b32 s33, {EP_OFF}")
    a.vm("buffer_load_dword v62, v4, s[24:27], s33 offen sc1")
    khead(a)
    a("s_mov_b32 s69, 0xffff0000")
    a("s_cmp_eq_u32 s36, 3")
    a("s_cbranch_scc1 P0_st2")
    a("v_lshrrev_b32 v8, 4, v2")
    a("v_bfe_u32 v9, v2, 1, 1")
    a("v_lshlrev_b32 v8, 4, v8")
    a("v_lshl_add_u32 v8, v9, 3, v8")
    a("v_bfe_u32 v9, v2, 2, 2")
    a("v_add_u32 v8, v8, v9")
    a("v_mul_u32_u24 v8, 144, v8")
    a("v_and_b32 v9, 1, v2")
    a("v_lshl_add_u32 v8, v9, 3, v8")
    a("s_mul_i32 s39, s36, 48")
    a(f"s_add_u32 s39, s39, {P0L}")
    a("v_add_u32 v8, s39, v8")
    a("s_lshl_b32 s30, s30, 7")
    a("v_lshrrev_b32 v9, 3, v2")
    a("v_lshl_add_u32 v9, v9, 4, s30")
    a("v_lshl_add_u32 v9, v6, 12, v9")
    a("s_mov_b32 s70, 0x0000ffff")
    a("s_waitcnt vmcnt(3)")
    a.vm_issued = a.vm_done = 0
    a("s_barrier")
    stamp(a, 2)
    KR, VR_, QR = 64, 82, 96
    tk = []; tq = []
    for e in range(3):
        for h in range(3): a.lg(f"ds_read_b64_tr_b16 v[{KR+6*e+2*h}:{KR+6*e+2*h+1}], v8 offset:{16*e + 576*h}")
        for h in range(2): t = a.lg(f"ds_read_b64_tr_b16 v[{VR_+4*e+2*h}:{VR_+4*e+2*h+1}], v8 offset:{P0S + 16*e + 576*(h+1)}")
        tk.append(t)
    for e in range(3):
        for h in range(2): t = a.lg(f"ds_read_b64_tr_b16 v[{QR+4*e+2*h}:{QR+4*e+2*h+1}], v8 offset:{2*P0S + 16*e + 576*(h+1)}")
        tq.append(t)
    WP = 28
    for e in range(3):
        w01, w23 = 20 + 2 * e, 21 + 2 * e
        b = WP + 5 * e
        a(f"v_alignbit_b32 v{b}, v{w23}, v{w23}, 16")
        a(f"v_alignbit_b32 v{b+1}, v{w01}, v{w01}, 16")
        a(f"v_and_b32 v{b+2}, s69, v{w23}")
        a(f"v_bfi_b32 v{b+3}, s70, v{w23}, v{w01}")
        a(f"v_and_b32 v{b+4}, s70, v{w01}")
    KS = 52; O = 10
    for e in range(3):
        b = WP + 5 * e; k = KR + 6 * e; v = VR_ + 4 * e
        a.wait(tk[e])
        for m in range(4):
            a(f"v_dot2_f32_bf16 v{KS+2*m}, v{k+m}, v{b+2}, 0")
            a(f"v_dot2_f32_bf16 v{KS+2*m+1}, v{k+m+1}, v{b}, 0")
        for m in range(4):
            a(f"v_dot2_f32_bf16 v{KS+2*m}, v{k+m+1}, v{b+3}, v{KS+2*m}")
            a(f"v_dot2_f32_bf16 v{KS+2*m+1}, v{k+m+2}, v{b+1}, v{KS+2*m+1}")
        for m in range(4):
            a(f"v_dot2_f32_bf16 v{KS+2*m}, v{k+m+2}, v{b+4}, v{KS+2*m}")
        T = 44
        for m in range(4):
            a(f"v_lshlrev_b32 v{T+2*m}, 16, v{v+m}")
            a(f"v_and_b32 v{T+2*m+1}, s69, v{v+m}")
        for j in range(8):
            a(f"v_mul_f32 v{T+j}, v{T+j}, v{KS+j}")
        o = (12, 16, 108)[e]
        for m in range(4):
            a(f"v_cvt_pk_bf16_f32 v{o+m}, v{T+7-2*m}, v{T+6-2*m}")
        a(f"s_mov_b32 s71, {UT_OFF + 8*4096*e}")
        a.vm(f"buffer_store_dwordx4 v[{o}:{o+3}], v9, s[24:27], s71 offen sc1")
        a.wait(tq[e])
        a(f"s_mov_b32 s72, {XT_OFF + 8*4096*e}")
        a.vm(f"buffer_store_dwordx4 v[{QR+4*e}:{QR+4*e+3}], v9, s[24:27], s72 offen sc1")
    a("s_branch P0_j3")
    a("P0_st2:")
    a("s_mov_b32 s70, 0x3f803f80")
    for i in range(4): a(f"v_mov_b32 v{48+i}, 0")
    a("s_waitcnt vmcnt(3)")
    a("s_barrier")
    stamp(a, 2)
    for j in range(36):
        a(f"v_dot2c_f32_bf16 v{48 + j%2}, s70, v{12+j}")
        a(f"v_dot2c_f32_bf16 v{50 + j%2}, v{12+j}, v{12+j}")
    a("s_nop 2")
    a("v_add_f32 v48, v48, v49")
    a("v_add_f32 v50, v50, v51")
    for ctrl in ("quad_perm:[1,0,3,2]", "quad_perm:[2,3,0,1]", "row_half_mirror"):
        a("s_nop 1")
        a(f"v_add_f32_dpp v48, v48, v48 {ctrl} row_mask:0xf bank_mask:0xf")
        a(f"v_add_f32_dpp v50, v50, v50 {ctrl} row_mask:0xf bank_mask:0xf")
    a(f"v_mul_f32 v48, {1.0/576!r}, v48")
    a(f"v_mul_f32 v50, {1.0/576!r}, v50")
    a("v_fma_f32 v50, -v48, v48, v50")
    a("v_max_f32 v50, 0, v50")
    a("v_add_f32 v50, 0x3727c5ac, v50")
    a("v_rsq_f32 v52, v50")
    a("v_lshlrev_b32 v5, 3, v5")
    a("v_mul_f32 v53, v48, v52")
    a("v_sub_f32 v53, 0, v53")
    a(f"s_mov_b32 s71, {ST_OFF}")
    a("v_cmp_eq_u32 vcc, 0, v7")
    a("s_and_saveexec_b64 s[72:73], vcc")
    a.vm("buffer_store_dwordx2 v[52:53], v5, s[24:27], s71 offen sc1")
    a("s_mov_b64 exec, -1")
    a("P0_j3:")
    stamp(a, 3)
    a.vm_issued = a.vm_done = 0; a.lg_issued = a.lg_done = 0

def conv(a, wpre, early):
    if C.kpre: p0_pub(a, kdma(a))
    else:
        p0_pub(a, 0); kdma(a)
    early(a)
    a("s_lshl_b32 s37, s34, 1")
    a("s_and_b32 s38, s37, 0xfffffffc")
    a(f"s_load_dword s39, s[{PSD}:{PSD+1}], s38")
    a(f"s_mul_i32 s30, s36, {4*KC_STRIDE}")
    a("s_mul_i32 s31, s36, 4608")
    a(f"s_add_u32 s31, s31, {K1_U}")
    a("v_and_b32 v5, 15, v2")
    a("v_lshrrev_b32 v6, 4, v2")
    a("v_lshlrev_b32 v7, 5, v5")
    a("v_lshl_add_u32 v7, v6, 3, v7")
    a("v_mov_b32 v12, 0\nv_mov_b32 v13, 0\nv_mov_b32 v14, 0\nv_mov_b32 v15, 0")
    a("v_and_b32 v8, 31, v2")
    a("v_lshl_add_u32 v9, v8, 4, s31")
    a.lg("ds_write_b128 v9, v[12:15]")
    a(f"v_mul_u32_u24 v10, {C.fs0}, v8")
    a(f"s_mul_i32 s66, s28, {32*C.fs0}")
    a(f"s_add_u32 s66, s66, {FL0}")
    a("v_lshrrev_b32 v11, 3, v2")
    a("v_lshlrev_b32 v11, 5, v11")
    a("v_and_b32 v9, 7, v2")
    a("v_add_u32 v11, v11, v9")
    a(f"v_mul_u32_u24 v11, {C.fs0}, v11")
    a(f"s_mul_i32 s67, s36, {8*C.fs0}")
    a(f"s_add_u32 s67, s67, {FL0}")
    a("v_add_u32 v9, 1, v5")
    a("v_and_b32 v9, 3, v9")
    a("v_lshlrev_b32 v32, 3, v6")
    a("v_sub_u32 v32, v5, v32")
    a("v_sub_u32 v32, v32, v9")
    a("v_add_u32 v32, 25, v32")
    a("v_lshlrev_b32 v32, 1, v32")
    a(f"v_mul_u32_u24 v9, {KC_STRIDE}, v9")
    a("v_add3_u32 v32, v32, v9, s30")
    a("v_lshlrev_b32 v33, 5, v5")
    a("v_lshl_add_u32 v33, v6, 4, v33")
    a("v_add3_u32 v33, v33, s31, 32")
    a("v_lshrrev_b32 v9, 1, v6")
    a("v_lshlrev_b32 v34, 5, v5")
    a("v_lshl_add_u32 v34, v9, 4, v34")
    a("v_and_b32 v9, 1, v6")
    a("v_xor_b32 v9, 1, v9")
    a("v_lshl_add_u32 v34, v9, 3, v34")
    a("v_add_u32 v34, s31, v34")
    a(f"v_lshlrev_b32 v35, 2, v7")
    a(f"v_add_u32 v35, {K1_ST}, v35")
    a("v_lshrrev_b32 v36, 2, v5")
    a("v_and_b32 v37, 3, v5")
    a("v_lshlrev_b32 v38, 4, v36")
    a("v_sub_u32 v38, 64, v38")
    a(f"v_mul_u32_u24 v39, {KC_STRIDE}, v36")
    a("v_lshl_add_u32 v39, v37, 3, v39")
    a("v_add_u32 v39, s30, v39")
    a("v_cmp_eq_u32 vcc, 3, v37")
    a("v_cmp_ne_u32 s[70:71], 0, v36")
    a("s_and_b64 vcc, vcc, s[70:71]")
    a("v_lshlrev_b64 v[60:61], v38, v[60:61]")
    a("s_nop 0")
    a("v_cndmask_b32 v60, 0, v60, vcc")
    a("v_cndmask_b32 v61, 0, v61, vcc")
    a.lg("ds_write_b64 v39, v[60:61]")
    a("s_waitcnt lgkmcnt(0)"); a.lg_done = a.lg_issued
    a("s_and_b32 s37, s37, 2")
    a("s_lshl_b32 s37, s37, 3")
    a("s_lshr_b32 s39, s39, s37")
    a("s_lshl_b32 s39, s39, 16")
    a(f"s_add_u32 s68, s35, {UT_OFF}")
    a(f"s_add_u32 s70, s35, {XT_OFF}")
    a(f"s_add_u32 s71, s35, {HT_OFF}")
    a("s_lshl_b32 s72, s36, 12")
    ACC = 40; AR = 72; NR = 8; EP = 104; XR = 16
    atok = {}; btok = {}
    def load_a(c):
        r = AR + 4 * (c % NR)
        a.lg(f"ds_read_b64 v[{r}:{r+1}], v32 offset:{64*c}")
        atok[c] = a.lg(f"ds_read_b64 v[{r+2}:{r+3}], v32 offset:{64*c+8}")
    a("s_cmp_lg_u32 s36, 0")
    a("s_cbranch_scc1 CV_p1")
    poll(a, [(9, 10, "s66", 0)])
    a("CV_p1:")
    a("s_barrier")
    stamp(a, 4)
    a("s_add_u32 m0, s31, 512")
    a("s_nop 0")
    for z in range(4):
        a.vm(f"buffer_load_dwordx4 v3, s[24:27], s68 offen offset:{1024*z} sc1 lds")
    poll(a, [(9, 11, "s67", 0)])
    a(f"s_add_u32 m0, s72, {K1_ST}")
    a(f"s_add_u32 s72, s72, {ST_OFF}")
    def breg(j, rho): return 4 * (8 * rho + j)
    def load_b(j, rho):
        r = breg(j, rho)
        btok[(j, rho)] = a.lg(f"ds_read_b128 a[{r}:{r+3}], v33 offset:{512*j+64*(7-rho)}")
    load_a(0)
    for j in range(8): load_b(j, 0)
    load_a(1)
    for z in range(4):
        tst = a.vm(f"buffer_load_dwordx4 v3, s[24:27], s72 offen offset:{1024*z} sc1 lds")
    tx = [a.vm(f"buffer_load_dwordx2 v[{XR+2*t}:{XR+2*t+1}], v7, s[24:27], s70 offen offset:{512*t} sc1") for t in range(8)]
    stamp(a, 5)
    def ep_pieces(t):
        e = EP + (t % 2) * 24
        KV, STA, T0, O = e, e + 4, e + 12, e + 20
        toks = {}
        def p0_():
            if t == 0:
                a.wait(tst); a("s_barrier")
            toks["kv"] = a.lg(f"ds_read_b64 v[{KV}:{KV+1}], v34 offset:{512+512*t}")
            a.lg(f"ds_read_b128 v[{STA}:{STA+3}], v35 offset:{2048*t}")
            toks["st"] = a.lg(f"ds_read_b128 v[{STA+4}:{STA+7}], v35 offset:{2048*t+16}")
        ps = [p0_]
        acc = ACC + 4 * t
        x = XR + 2 * t
        def mk(s, w=None):
            def f():
                if w: a.wait(*[toks[k] if isinstance(k, str) else k for k in w])
                a(s)
            return f
        ps.append(mk(f"v_and_b32 v{T0}, s69, v{KV+1}", ["kv"]))
        ps.append(mk(f"v_lshlrev_b32 v{T0+1}, 16, v{KV+1}"))
        ps.append(mk(f"v_and_b32 v{T0+2}, s69, v{KV}"))
        ps.append(mk(f"v_lshlrev_b32 v{T0+3}, 16, v{KV}"))
        for r in range(4):
            ps.append(mk(f"v_fma_f32 v{T0+r}, v{T0+r}, s39, v{acc+r}"))
        ps.append(mk(f"v_lshlrev_b32 v{T0+4}, 16, v{x}", [tx[t]]))
        ps.append(mk(f"v_and_b32 v{T0+5}, s69, v{x}"))
        ps.append(mk(f"v_lshlrev_b32 v{T0+6}, 16, v{x+1}"))
        ps.append(mk(f"v_and_b32 v{T0+7}, s69, v{x+1}"))
        for r in range(4):
            ps.append(mk(f"v_fmac_f32 v{STA+2*r+1}, v{T0+4+r}, v{STA+2*r}", ["st"]))
        for r in range(4):
            ps.append(mk(f"v_fmac_f32 v{T0+4+r}, v{STA+2*r+1}, v{T0+r}"))
        ps.append(mk(f"v_cvt_pk_bf16_f32 v{O}, v{T0+4}, v{T0+5}"))
        ps.append(mk(f"v_cvt_pk_bf16_f32 v{O+1}, v{T0+6}, v{T0+7}"))
        def st(): a.vm(f"buffer_store_dwordx2 v[{O}:{O+1}], v7, s[24:27], s71 offen offset:{512*t} sc1")
        ps.append(st)
        return ps
    PF = 5
    pend = []
    nm = 0
    nexta = 2
    wpre = list(wpre)
    for c in range(64):
        i, rho = c // 8, c % 8
        for t in range(i, 8):
            j = t - i
            a.wait(atok[c], btok[(j, rho)])
            ra = AR + 4 * (c % NR); rb = breg(j, rho); acc = ACC + 4 * t
            src = "0" if c == 0 else f"v[{acc}:{acc+3}]"
            a(f"v_mfma_f32_16x16x32_bf16 v[{acc}:{acc+3}], v[{ra}:{ra+3}], a[{rb}:{rb+3}], {src}")
            nm += 1
            slots = 2
            if i == 0 and rho < 7:
                load_b(j, rho + 1); slots -= 1
            if nexta < 64 and nexta <= c + (2 if i == 0 else PF) and nexta - c < NR - 1 and (t == i or i > 0):
                load_a(nexta); nexta += 1; slots -= 2
            while slots > 0 and pend and pend[0][0] <= nm:
                pend.pop(0)[1](); slots -= 1
            if slots == 2 and wpre and nm > 90 and nm % 4 == 0:
                wpre.pop(0)()
            if rho == 7 and t == i:
                ps = ep_pieces(t)
                pend.append((nm, ps[0]))
                pend += [(nm + 5, p) for p in ps[1:]]
    assert not wpre
    stamp(a, 6)
    a("s_nop 7")
    for _, p in pend: p()

def colsum(a):
    a("s_sub_u32 s34, s2, 144")
    a("s_lshr_b32 s35, s34, 2")
    a("s_and_b32 s37, s34, 3")
    a("s_cmp_ge_u32 s35, 9")
    a(f"s_cselect_b32 s8, s{PWU}, s{PWG}")
    a(f"s_cselect_b32 s9, s{PWU+1}, s{PWG+1}")
    a("s_cselect_b32 s38, 9, 0")
    a(f"s_mov_b32 s10, {D*F*2}")
    a("s_mov_b32 s11, 0x00020000")
    a("s_sub_u32 s38, s35, s38")
    a("s_lshl_b32 s38, s38, 10")
    a("s_lshl_b32 s39, s37, 2")
    a("s_add_u32 s39, s39, s36")
    a(f"s_mul_i32 s39, s39, {36*F*2}")
    a("s_add_u32 s38, s38, s39")
    L = 112
    tl = []
    for i in range(36):
        if i == C.hpre: p0_pub(a, i)
        tl.append(a.vm(f"buffer_load_dwordx4 v[{L+4*i}:{L+4*i+3}], v3, s[8:11], s38 offen"))
        a(f"s_add_u32 s38, s38, {F*2}")
    for e in range(8): a(f"v_mov_b32 v{8+e}, 0")
    for i in range(36):
        a.wait(tl[i])
        for w in range(4):
            r = L + 4 * i + w
            a(f"v_lshlrev_b32 v6, 16, v{r}")
            a(f"v_and_b32 v7, s69, v{r}")
            a(f"v_add_f32 v{8+2*w}, v{8+2*w}, v6")
            a(f"v_add_f32 v{9+2*w}, v{9+2*w}, v7")
    a("v_lshlrev_b32 v6, 5, v0")
    a.lg("ds_write_b128 v6, v[8:11]")
    a.lg("ds_write_b128 v6, v[12:15] offset:16")
    a.wait_all(vm=False)
    a("s_barrier")
    a("v_lshlrev_b32 v6, 3, v0")
    tt = [a.lg(f"ds_read_b64 v[{8+2*e}:{9+2*e}], v6 offset:{2048*e}") for e in range(4)]
    a.wait(tt[3])
    for e in range(1, 4):
        a(f"v_add_f32 v8, v8, v{8+2*e}")
        a(f"v_add_f32 v9, v9, v{9+2*e}")
    a(f"s_mul_i32 s38, s37, {2*F*4}")
    a("s_lshl_b32 s39, s35, 11")
    a("s_add_u32 s38, s38, s39")
    a(f"s_add_u32 s38, s38, {CS_OFF}")
    a.vm("buffer_store_dwordx2 v[8:9], v6, s[24:27], s38 offen sc1")
    a("s_branch HELP_done")

def pack(a):
    a("s_sub_u32 s34, s2, 216")
    a("s_cmp_lt_u32 s34, 36")
    a("s_cbranch_scc1 PACK_go")
    p0_pub(a, 0)
    a("s_branch HELP_done")
    a("PACK_go:")
    srd(a, 8, PWD, PWD + 1, F * D * 2)
    a(f"s_mul_i32 s35, s34, {4*36864}")
    a("s_mul_i32 s37, s36, 9216")
    a("s_add_u32 s35, s35, s37")
    tl = []
    for u in range(4):
        for n in range(9):
            if 9 * u + n == C.hpre: p0_pub(a, C.hpre)
            if n % 4 == 0:
                a(f"s_add_u32 m0, s37, {u*36864 + n*1024}")
                a(f"s_add_u32 s38, s35, {u*36864 + n*1024}")
            t = a.vm(f"buffer_load_dwordx4 v3, s[8:11], s38 offen offset:{(n%4)*1024} lds")
        tl.append(t)
    a("s_mul_hi_u32 s30, s34, 0x1C71C71D")
    a("s_mul_i32 s39, s30, 9")
    a("s_sub_u32 s39, s34, s39")
    a("s_lshl_b32 s39, s39, 2")
    a("s_lshl_b32 s33, s30, 2")
    a("s_add_u32 s33, s33, s36")
    a(f"s_mul_i32 s33, s33, {324*1024}")
    a(f"s_add_u32 s33, s33, {WD_OFF}")
    a("v_lshrrev_b32 v5, 2, v2")
    a("v_mul_u32_u24 v5, 1152, v5")
    a("v_and_b32 v6, 3, v2")
    a("s_mul_i32 s66, s36, 288")
    a("v_add_u32 v5, s66, v5")
    a("v_lshl_add_u32 v12, v6, 3, v5")
    a("v_lshl_add_u32 v5, v6, 4, v5")
    for e in range(4):
        a(f"s_add_u32 s66, s30, {e}")
        a("s_and_b32 s66, s66, 3")
        a("s_lshl_b32 s66, s66, 6")
        a(f"v_add_u32 v{8+e}, s66, v5")
    for u in range(4):
        a(f"s_add_u32 s66, s39, {u}")
        a("s_mul_hi_u32 s31, s66, 0x1C71C71D")
        a("s_mul_i32 s67, s31, 9")
        a("s_sub_u32 s66, s66, s67")
        a("s_add_u32 s67, s66, 8")
        a("s_cmp_ge_u32 s67, 9")
        a("s_cselect_b32 s68, 9, 0")
        a("s_sub_u32 s67, s67, s68")
        a("s_bitcmp1_b32 s31, 0")
        a("s_cselect_b32 s66, s67, s66")
        a("s_lshr_b32 s67, s66, 1")
        a("s_lshl_b32 s67, s67, 3")
        a("s_and_b32 s68, s66, 5")
        a("s_add_u32 s67, s67, s68")
        a("s_lshl_b32 s68, s31, 1")
        a("s_add_u32 s67, s67, s68")
        a("s_add_u32 s68, s31, 16")
        a("s_cmp_eq_u32 s66, 8")
        a("s_cselect_b32 s67, s68, s67")
        a("s_mul_i32 s70, s67, 7")
        a("s_add_u32 s73, s70, 5")
        a("s_mul_i32 s68, s67, 5")
        a(f"s_add_u32 s68, s68, {2*C.ka}")
        a("s_lshl_b32 s72, s67, 1")
        a(f"s_add_u32 s74, s72, 180")
        a(f"s_cmp_ge_u32 s67, {C.ka}")
        a("s_cselect_b32 s70, s68, s70")
        a("s_cselect_b32 s73, s74, s73")
        a("s_lshl_b32 s70, s70, 10")
        a("s_add_u32 s70, s70, s33")
        a("s_add_u32 s71, s70, 4096")
        a("s_lshl_b32 s73, s73, 10")
        a("s_add_u32 s73, s73, s33")
        a("s_lshl_b32 s72, s72, 10")
        a("s_add_u32 s72, s72, s33")
        a(f"s_add_u32 s72, s72, {252*1024}")
        a.wait(tl[u])
        a("s_barrier")
        if u == 2:
            for e in range(5): a(f"v_add_u32 v{8+e}, {2*36864}, v{8+e}")
        R = 16 + 36 * u
        uo = 36864 * (u % 2)
        lst = []
        for e in (1, 2):
            for ab in range(2): lst.append((8 + e, 8 * ab, "s70", ((e - 1) * 2 + ab) * 1024))
        lst.append((12, 256, "s71", 0))
        for ab in range(2): lst.append((11, 8 * ab, "s73", ab * 1024))
        for ab in range(2): lst.append((8, 8 * ab, "s72", ab * 1024))
        tt = []
        for n, (va, off, p1, p2) in enumerate(lst):
            r = R + 4 * n
            a.lg(f"ds_read_b64_tr_b16 v[{r}:{r+1}], v{va} offset:{uo + off}")
            tt.append(a.lg(f"ds_read_b64_tr_b16 v[{r+2}:{r+3}], v{va} offset:{uo + off + 16*1152}"))
        for n, (va, off, p1, p2) in enumerate(lst):
            r = R + 4 * n
            a.wait(tt[n])
            so, imm = p1, p2
            a.vm(f"buffer_store_dwordx4 v[{r}:{r+3}], v3, s[24:27], {so} offen offset:{imm} sc1")
    a("s_barrier")
```

```python
from common import *
from pa import *
from ffn import *
import common

def kernel():
    common._lab[0] = 0
    a = Asm(); slow = Asm()
    prologue(a)
    p0(a)
    if C.stop == "p0": p0_pub(a, 0)
    else:
        a("s_cmp_ge_u32 s29, 18")
        a("s_cbranch_scc1 HELP")
        wpre = [(lambda c=c, n=n: wdma(a, 0, c, 4 + c, n)) for c in range(2) for n in range(6)]
        conv(a, wpre, setup_early)
        a("s_branch JOIN")
        a("HELP:")
        a.vm_issued = a.vm_done = a.lg_issued = a.lg_done = 0
        a("s_cmp_ge_u32 s29, 27")
        a("s_cbranch_scc1 PACK")
        colsum(a)
        a("PACK:")
        a.vm_issued = a.vm_done = a.lg_issued = a.lg_done = 0
        pack(a)
        a("HELP_done:")
        a.vm_issued = a.vm_done = a.lg_issued = a.lg_done = 0
        setup_early(a)
        for c in range(2):
            for n in range(6): wdma(a, 0, c, 4 + c, n)
        a("JOIN:")
        a("s_waitcnt lgkmcnt(0)")
        a.lg_issued = a.lg_done = 0
        setup_late(a)
        ffn(a, slow)
    stamp_flush(a, 15, 8)
    a("END:")
    a("s_endpgm")
    a.lines += slow.lines
    return a, dict(grid=256, block=256, lds=LDS_TOTAL, vgpr=512, accum=256)

if __name__ == "__main__":
    for stop in ("p0", "p1", "g1", None):
        C.stop = stop
        build(*kernel(), f"m_{stop or 'all'}.s")
    C.stamps = True
    build(*kernel(), "m_st.s")
    C.dbg = 37
    build(*kernel(), "m_dbg.s")
    C.dbg = None
    C.stamp_ins = "s_memtime"
    build(*kernel(), "m_cyc.s")
```

```python
import sys
sys.path.insert(0, "work2")
from fw import *
from asmlib import *

S, D, F = 2048, 576, 4608
UT_OFF = 0x0000000
UG_OFF = 0x3000000
XT_OFF = 0x0240000
HT_OFF = 0x0480000
ST_OFF = 0x06C0000
CS_OFF = 0x06C8000
FL_OFF = 0x0700000
FL0 = FL_OFF + 0x30000
FL1 = FL_OFF + 0x8000
FLA = FL_OFF + 0x10000
FLG = FL_OFF + 0x20000
FLQ = FL_OFF + 0x28000
EP_OFF = FL_OFF + 0x60000
HH_OFF = 0x0800000
WD_OFF = 0x1A00000
PX_OFF = 0x2000000
PY_OFF = 0x2C00000
WS_BYTES = 268435456
SD_BYTES = S * D * 2
STAMP_OFF = 0x8000000

class Cfg:
    stamps = False
    stamp_ins = "s_memrealtime"
    stop = None
    fs0 = 64
    fs1 = 64
    abl = set()
    dbg = None
    ka = 14
    misc0 = 100
    ssp = 9
    rx1 = 50
    rx2 = 115
    cap3 = 3
    fst = ["1", "Mg[1]", "Mg[3]", "M5", "M6", "NM"]
    maxlead = {}
    pub3 = 150
    hsp = 8.6
    late0 = 240
    hsp2 = 6
    hw = 8
    pw = 2
    ntkv = 'nt'
    ntk = ('', '')
    ntcs = ''
    ntpk = 'nt'
    ntw = ''
    cf0 = 8
    cf1 = 50
    cep = 124
C = Cfg

NST = 16
def stamp(a, i):
    if not C.stamps: return
    a(f"{C.stamp_ins} s[98:99]")
    a("s_waitcnt lgkmcnt(0)"); a.lg_done = a.lg_issued
    a(f"s_mov_b32 s{76+i}, s98")
def stamp_init(a):
    if not C.stamps: return
    for i in range(1, NST): a(f"s_mov_b32 s{76+i}, 0")
    stamp(a, 0)
def stamp_flush(a, last, vb):
    if not C.stamps: return
    a("s_waitcnt vmcnt(0)")
    stamp(a, last)
    a("s_mov_b64 exec, 1")
    if C.dbg is not None:
        L = label("DBG")
        a(f"s_cmp_lg_u32 s7, {C.dbg}")
        a(f"s_cbranch_scc1 {L}")
        a("s_cmp_lg_u32 s36, 0")
        a(f"s_cbranch_scc1 {L}")
        a("s_load_dwordx2 s[96:97], s[0:1], 88")
        a("s_waitcnt lgkmcnt(0)")
        srd(a, 24, 96, 97, 256)
        for i in range(NST):
            a(f"s_sub_u32 s96, s{76+i}, s76")
            a(f"v_mov_b32 v{vb+i}, s96")
        a(f"v_mov_b32 v{vb+16}, 0")
        for j in range(4):
            a(f"buffer_store_dwordx4 v[{vb+4*j}:{vb+4*j+3}], v{vb+16}, s[24:27], 0 offen offset:{16*j}")
        a(f"{L}:")
        return
    for i in range(NST): a(f"v_mov_b32 v{vb+i}, s{76+i}")
    a("s_lshl_b32 s96, s7, 2")
    a("s_add_u32 s96, s96, s36")
    a("s_lshl_b32 s96, s96, 6")
    a(f"s_add_u32 s96, s96, {STAMP_OFF}")
    a(f"v_mov_b32 v{vb+16}, 0")
    for j in range(4):
        a(f"buffer_store_dwordx4 v[{vb+4*j}:{vb+4*j+3}], v{vb+16}, s[24:27], s96 offen offset:{16*j}")

def srd(a, d, lo, hi, size):
    a(f"s_mov_b32 s{d}, s{lo}")
    a(f"s_mov_b32 s{d+1}, s{hi}")
    a(f"s_mov_b32 s{d+2}, {size}")
    a(f"s_mov_b32 s{d+3}, 0x00020000")

_lab = [0]
def label(p="L"):
    _lab[0] += 1
    return f"{p}_{_lab[0]}"

SPIN = 40000
def poll(a, loads, scnt=97):
    L = label("POLL"); Dn = label("PDONE")
    a(f"s_mov_b32 s{scnt}, {SPIN}")
    a(f"{L}:")
    for vt, va, so, imm in loads:
        a(f"buffer_load_dword v{vt}, v{va}, s[24:27], {so} offen offset:{imm} sc1")
    a("s_waitcnt vmcnt(0)")
    for n, (vt, va, so, imm) in enumerate(loads):
        if n == 0: a(f"v_xor_b32 v{vt}, s3, v{vt}")
        else:
            a(f"v_xor_b32 v{vt}, s3, v{vt}")
            a(f"v_or_b32 v{loads[0][0]}, v{loads[0][0]}, v{vt}")
    a(f"v_cmp_ne_u32 vcc, 0, v{loads[0][0]}")
    a(f"s_cbranch_vccz {Dn}")
    a(f"s_sub_u32 s{scnt}, s{scnt}, 1")
    a(f"s_cbranch_scc0 {L}")
    a(f"{Dn}:")
    a.vm_done = a.vm_issued

def flag_store(a, vt, soff_reg):
    a("s_mov_b64 exec, 1")
    a(f"v_mov_b32 v{vt}, s3")
    a(f"v_mov_b32 v{vt+1}, 0")
    a.vm(f"buffer_store_dword v{vt}, v{vt+1}, s[24:27], s{soff_reg} offen sc1")
    a("s_mov_b64 exec, -1")

def build(a, m, fn):
    out = [f"; @launch grid=({m['grid']},1,1) block=({m['block']},1,1) lds={m['lds']}"]
    out.append('.amdgcn_target "amdgcn-amd-amdhsa--gfx950"\n.text')
    n = NAME + "_kernel"
    errs = check_hazards(a.lines, "k")
    for e in errs: print("HAZARD", e)
    out.append(kernel_header(n) + a.text())
    out.append('.section .rodata,"a"')
    out.append(kernel_desc(n, m["vgpr"], 102, m.get("accum")))
    open(fn, "w").write("\n".join(out))
```

```python
from common import *
from pa import *

G1_CS = 0
G1_STX = 2560
ACC = 8
XV = 136
VW = 168
AA = 171
VC = 180
MEAN = 182
DA = 186
VH8 = 189
VFL = 190
VT = 192
AR = 196
CSR = 228
ET = 244
VSP = 252
VWH = 252
NR = 8
SM0, SWF, SWH = 40, 41, 42
SKQ, SCQ, SRB, SODD, SFL = 43, 44, 45, 46, 47
SX, SD_, SHS, SHH, SHL = 48, 49, 50, 62, 63
SFLH, SFLHO, STMP = 65, 66, 67
SSP, SP = 30, 31
SHT = 67

def setup_early(a):
    a(f"s_lshr_b32 s{SKQ}, s28, 1")
    a(f"s_and_b32 s{SCQ}, s29, 3")
    a(f"s_and_b32 s{SRB}, s28, 1")
    a(f"s_lshl_b32 s{SRB}, s{SRB}, 3")
    a("s_lshr_b32 s73, s29, 2")
    a(f"s_add_u32 s{SRB}, s{SRB}, s73")
    a(f"s_and_b32 s{SODD}, s29, 1")
    a(f"s_lshl_b32 s73, s{SKQ}, 2")
    a(f"s_add_u32 s73, s73, s{SCQ}")
    a("s_mul_i32 s73, s73, 288")
    a(f"s_and_b32 s{SFL}, s73, 0xffffffc0")
    a("s_and_b32 s73, s36, 1")
    a(f"s_mul_i32 s73, s73, {48*9216}")
    a(f"s_lshl_b32 s74, s{SODD}, 6")
    a(f"s_add_u32 s74, s74, s{SFL}")
    a(f"s_lshl_b32 s{SWF}, s74, 1")
    a(f"s_add_u32 s{SWF}, s{SWF}, s73")
    a(f"s_cmp_eq_u32 s{SODD}, 0")
    a("s_cselect_b32 s74, 256, 32")
    a(f"s_add_u32 s74, s74, s{SFL}")
    a("s_add_u32 s74, s74, s73")
    a(f"s_lshl_b32 s{SWH}, s74, 1")
    a(f"s_mul_i32 s{SM0}, s36, 6144")
    a(f"s_add_u32 s{SM0}, s{SM0}, {RING}")
    a("s_cmp_lt_u32 s36, 2")
    a(f"s_cselect_b32 s8, s{PWG}, s{PWU}")
    a(f"s_cselect_b32 s9, s{PWG+1}, s{PWU+1}")
    a(f"s_mov_b32 s10, {D*F*2}")
    a("s_mov_b32 s11, 0x00020000")
    a(f"v_lshrrev_b32 v{VT}, 3, v2")
    a(f"v_mul_u32_u24 v{VT}, 9216, v{VT}")
    a(f"v_bfe_u32 v{VT+1}, v2, 1, 2")
    a(f"v_lshrrev_b32 v{VT+2}, 4, v2")
    a(f"v_xor_b32 v{VT+1}, v{VT+1}, v{VT+2}")
    a(f"v_lshl_add_u32 v{VT}, v{VT+1}, 5, v{VT}")
    a(f"v_and_b32 v{VT+1}, 1, v2")
    a(f"v_lshl_add_u32 v{VW}, v{VT+1}, 4, v{VT}")
    a(f"v_add_u32 v{VW+1}, {8*9216-1024}, v{VW}")
    a(f"v_add_u32 v{VW+2}, {2*(8*9216-1024)}, v{VW}")

def wdma(a, g, c, sl, n):
    b, u = n // 3, n % 3
    if u == 0:
        a(f"s_add_u32 m0, s{SM0}, {sl*SLOT + 3072*b}")
        if g < 4: a(f"s_add_u32 s75, s{SWF}, {(96*c + 24*b)*9216 + g*128}")
        else: a(f"s_add_u32 s75, s{SWH}, {(192*c + 48*b)*9216}")
    return a.vm(f"buffer_load_dwordx4 v{(VW if g < 4 else VWH)+u}, s[8:11], s75 offen offset:{1024*u} {C.ntw} lds")

B1 = ACC + 64
VX = B1
XA = B1 + 2
VSW = B1 + 14
VSR = 255
VSW2 = VT + 3
VCS = B1 + 15
VCW = B1 + 16
VP = B1 + 17
CT = B1 + 24
VTX = B1 + 40
ONES = ET

def setup_late(a):
    a(f"s_and_b32 s{SSP}, s36, 1")
    a(f"s_lshr_b32 s{SP}, s36, 1")
    t0, t1, t2, t3 = VT, VT + 1, VT + 2, VT + 3
    a(f"v_lshrrev_b32 v{t0}, 4, v2")
    a(f"v_bfe_u32 v{t1}, v2, 1, 3")
    a(f"v_xor_b32 v{t1}, v{t1}, v{t0}")
    a(f"v_and_b32 v{t2}, 1, v2")
    a(f"v_lshlrev_b32 v{t2}, 4, v{t2}")
    a(f"v_lshl_add_u32 v{t2}, v{t0}, 12, v{t2}")
    a(f"v_lshl_add_u32 v{VX}, v{t1}, 5, v{t2}")
    a(f"v_xor_b32 v{t1}, 4, v{t1}")
    a(f"v_lshl_add_u32 v{VX+1}, v{t1}, 5, v{t2}")
    a(f"v_add_u32 v{VX+1}, {4*4096-1024}, v{VX+1}")
    a(f"s_mul_i32 s{SX}, s36, {24*4096}")
    a(f"s_lshl_b32 s73, s{SRB}, 8")
    a(f"s_add_u32 s{SX}, s{SX}, s73")
    a(f"s_add_u32 s{SX}, s{SX}, {HT_OFF}")
    a(f"v_mul_u32_u24 v{VP}, {C.fs1}, v2")
    a(f"v_min_u32 v{VP+1}, 15, v2")
    a(f"v_add_u32 v{VP+1}, 128, v{VP+1}")
    a(f"v_mul_u32_u24 v{VP+1}, {C.fs1}, v{VP+1}")
    a(f"v_add_u32 v{VP+2}, {64*C.fs1}, v{VP}")
    a(f"v_lshrrev_b32 v{t1}, 2, v2")
    a(f"v_and_b32 v{t2}, 3, v2")
    a(f"v_lshlrev_b32 v{t2}, 3, v{t2}")
    a(f"v_lshl_add_u32 v{t3}, v{t1}, 7, v{t2}")
    a(f"v_add_u32 v{t3}, {RING}, v{t3}")
    a(f"v_bfe_u32 v5, v2, 3, 2")
    a(f"s_lshl_b32 s70, s{SP}, 1")
    a("s_add_u32 s71, s70, 1")
    a(f"s_lshl_b32 s72, s{SODD}, 1")
    a(f"s_add_u32 s72, s72, s{SP}")
    for u in range(3):
        if u == 2:
            a(f"v_lshl_add_u32 v{t3}, v{t1}, 6, v{t2}")
            a(f"v_add_u32 v{t3}, {RING}, v{t3}")
            a(f"v_bfe_u32 v5, v2, 4, 1")
        a(f"v_xor_b32 v6, s{(70, 71, SP)[u]}, v5")
        a(f"v_lshl_add_u32 v{AA+3*u}, v6, 5, v{t3}")
        a(f"v_add_u32 v{AA+3*u+1}, {2*SLOT}, v{AA+3*u}")
        a(f"v_add_u32 v{AA+3*u+2}, {4*SLOT}, v{AA+3*u}")
    a(f"v_bfe_u32 v6, v2, 1, 1")
    a(f"v_xor_b32 v6, v6, v5")
    a(f"v_mul_u32_u24 v7, 9216, v{t1}")
    a(f"v_lshl_add_u32 v7, v6, 5, v7")
    a(f"v_and_b32 v6, 1, v2")
    a(f"v_lshl_add_u32 v{VWH}, v6, 4, v7")
    a(f"v_add_u32 v{VWH+1}, {16*9216-1024}, v{VWH}")
    a(f"v_add_u32 v{VWH+2}, {2*(16*9216-1024)}, v{VWH}")
    a(f"v_lshl_add_u32 v{t3}, v{t1}, 8, v{t2}")
    a(f"v_add_u32 v{t3}, {RING}, v{t3}")
    a(f"v_and_b32 v5, 7, v{t1}")
    a(f"s_lshl_b32 s73, s{SSP}, 2")
    a(f"s_add_u32 s73, s73, s70")
    for t in range(4):
        a(f"s_xor_b32 s74, s73, {t}")
        a(f"v_xor_b32 v6, s74, v5")
        a(f"v_lshl_add_u32 v{XA+3*t}, v6, 5, v{t3}")
        a(f"v_add_u32 v{XA+3*t+1}, {2*SLOT}, v{XA+3*t}")
        a(f"v_add_u32 v{XA+3*t+2}, {4*SLOT}, v{XA+3*t}")
        a(f"s_lshl_b32 s{SHS+t}, s{SRB}, 3")
        a(f"s_add_u32 s{SHS+t}, s{SHS+t}, s74")
        a(f"s_mul_i32 s{SHS+t}, s{SHS+t}, 147456")
    a(f"s_lshr_b32 s74, s{SFL}, 5")
    a(f"s_add_u32 s74, s74, s72")
    a("s_lshl_b32 s74, s74, 10")
    a(f"s_add_u32 s74, s74, {HH_OFF}")
    for t in range(4): a(f"s_add_u32 s{SHS+t}, s{SHS+t}, s74")
    a(f"s_cmp_eq_u32 s{SODD}, 0")
    a(f"s_cselect_b32 s{SHH}, 8, 1")
    a(f"s_sub_u32 s{SHH}, s{SHH}, s72")
    a(f"s_lshl_b32 s{SHH}, s{SHH}, 10")
    a(f"s_lshl_b32 s74, s{SP}, 3")
    a(f"v_add_u32 v{VH8}, s74, v3")
    a(f"s_lshl_b32 s74, s{SODD}, 8")
    a(f"s_lshl_b32 s75, s{SP}, 7")
    a("s_add_u32 s74, s74, s75")
    a(f"s_add_u32 s74, s74, {G1_CS}")
    a(f"v_lshl_add_u32 v{VC}, v{t0}, 4, s74")
    a(f"s_cmp_eq_u32 s{SODD}, 0")
    a("s_cselect_b32 s74, 1024, 0")
    a("s_lshl_b32 s75, s72, 6")
    a("s_add_u32 s74, s74, s75")
    a(f"s_add_u32 s74, s74, {G1_CS}")
    a(f"v_lshl_add_u32 v{VC+1}, v{t0}, 4, s74")
    a("v_cmp_le_u32 vcc, 80, v0")
    a(f"v_lshlrev_b32 v{VCW}, 4, v0")
    a(f"v_mov_b32 v5, {4608*4 - 80*16}")
    a("v_cndmask_b32 v5, 0, v5, vcc")
    a(f"v_add_u32 v5, v5, v{VCW}")
    a("v_cmp_le_u32 vcc, 160, v0")
    a("v_mov_b32 v6, 0x7ffffff0")
    a(f"v_mov_b32 v7, {G1_STX + 1024 + 1024}")
    a(f"v_cndmask_b32 v{VCS}, v5, v6, vcc")
    a(f"v_add_u32 v{VCW}, {G1_CS}, v{VCW}")
    a(f"v_cndmask_b32 v{VCW}, v{VCW}, v7, vcc")
    a("v_and_b32 v5, 15, v2")
    a("s_lshl_b32 s74, s73, 7")
    a(f"s_add_u32 s74, s74, {G1_STX}")
    a(f"v_lshl_add_u32 v6, v5, 3, s74")
    a("s_xor_b32 s74, s74, 256")
    a(f"v_lshl_add_u32 v{VSR}, v5, 3, s74")
    a("v_lshrrev_b32 v7, 2, v5")
    a(f"v_cmp_eq_u32 vcc, v7, v{t0}")
    a(f"v_lshlrev_b32 v7, 3, v2")
    a(f"v_add_u32 v7, {G1_STX + 1024}, v7")
    a(f"v_cndmask_b32 v{VSW}, v7, v6, vcc")
    a("v_and_b32 v7, 1, v2")
    a("v_cmp_ne_u32 s[32:33], 0, v7")
    a("v_and_b32 v7, 2, v2")
    a("v_cmp_ne_u32 s[34:35], 0, v7")
    for i in range(4): a(f"v_mov_b32 v{ONES+i}, 0x3f803f80")
    a(f"v_add_u32 v{DA}, {RING}, v3")
    a(f"v_add_u32 v{DA+1}, {RING + 2*SLOT}, v3")
    a(f"v_add_u32 v{DA+2}, {RING + 4*SLOT}, v3")
    a(f"s_lshl_b32 s74, s{SKQ}, 2")
    a(f"s_add_u32 s74, s74, s{SCQ}")
    a(f"s_mul_i32 s{SD_}, s74, {324*1024}")
    a("s_mul_i32 s75, s36, 6144")
    a(f"s_add_u32 s{SD_}, s{SD_}, s75")
    a(f"s_add_u32 s{SD_}, s{SD_}, {WD_OFF}")
    a(f"s_lshl_b32 s74, s{SRB}, 3")
    a("s_lshl_b32 s75, s36, 1")
    a("s_add_u32 s74, s74, s75")
    a("s_mul_i32 s74, s74, 144")
    a(f"s_mul_i32 s75, s{SKQ}, 36")
    a("s_add_u32 s74, s74, s75")
    a("s_lshl_b32 s74, s74, 10")
    a(f"s_add_u32 s{SHL}, s74, {HH_OFF}")
    a(f"s_add_u32 s{SHL+1}, s{SHL}, 147456")
    a(f"s_lshl_b32 s74, s{SRB}, 2")
    a(f"s_add_u32 s74, s74, s{SKQ}")
    a("s_lshl_b32 s74, s74, 10")
    a(f"s_add_u32 s{SFLH}, s74, {FLA}")
    a(f"s_lshl_b32 s74, s{SCQ}, 8")
    a(f"s_add_u32 s{SFLHO}, s{SFLH}, s74")
    a(f"v_lshlrev_b32 v{VFL}, 5, v{t2}")
    a(f"v_lshlrev_b32 v{VFL+1}, 3, v{t2}")

def xreg(i):
    return ("a", 4 * i) if i < 64 else ("v", XV + 4 * (i - 64))
def rr(f, r, n=4): return f"{f}[{r}:{r+n-1}]"

def kap_fb(kap):
    if 16 <= kap < 20: i4, jp = kap - 16, 8
    else:
        k2 = kap if kap < 16 else kap - 4
        g, i4, lo = k2 // 8, (k2 % 8) // 2, k2 % 2; jp = 2 * g + lo
    j = (jp + 1) % 9 if i4 % 2 else jp
    return 9 * i4 + j

ORDER = [0, 1, 4, 2, 3]
WST = [(g, c) for g in ORDER for c in range(6 if g < 4 else 3)]
REG = {0: (0, 1), 1: (2, 3), 4: (0,), 2: (1, 2), 3: (3, 0)}
def acc_of(g, ti, t):
    if g == 4: return ACC + 32 * REG[g][0] + 16 * ti + 4 * t
    return ACC + 32 * REG[g][t >> 1] + 8 * ti + 4 * (t & 1)
HB = ACC + 32

def g2_order():
    a_ = C.ka
    o = [(k, z) for k in range(a_) for z in range(7)]
    o += [(k, z) for k in range(a_, 36) for z in range(5)]
    o += [(k, z) for k in range(a_, 36) for z in (5, 6)]
    o += [(k, z) for k in range(36) for z in (7, 8)]
    return o

def ffn(a, slow):
    DSC = "" if "dplain" in C.abl else "sc1"
    HSC = "" if "hplain" in C.abl else "sc1"
    hi = []; lo = []
    def add(at, fn): hi.append((at, len(hi), fn))
    def addlo(at, fn): lo.append((at, fn))
    ltok = {}; slot = {("X", 0): 0, ("X", 1): 1, ("X", 2): 2, ("W", 2): 3, ("W", 0): 4, ("W", 1): 5}
    NULL = Tok("vm", 0)
    ltok[("W", 0)] = ltok[("W", 1)] = NULL
    def dma(ld, n):
        k, s = ld; sl = slot[ld]
        if k == "W" and s >= 10 and "now" in C.abl: t = NULL
        elif k == "W": t = wdma(a, *WST[s], sl, n)
        elif k == "X":
            b, u = n // 2, n % 2
            if u == 0:
                a(f"s_add_u32 m0, s{SM0}, {sl*SLOT + 2048*b}")
                a(f"s_add_u32 s75, s{SX}, {(96*s + 8*b)*4096}")
            t = a.vm(f"buffer_load_dwordx4 v{VX+u}, s[24:27], s75 offen offset:{1024*u} sc1 lds")
        else:
            if s == 13:
                if n == 0:
                    a("s_mul_i32 s74, s36, 3072")
                    a(f"s_add_u32 m0, s74, {RING + sl*SLOT}")
                    a(f"s_sub_u32 s75, s{SD_}, s74")
                    a(f"s_add_u32 s75, s75, {s*SLOT}")
                t = a.vm(f"buffer_load_dwordx4 v3, s[24:27], s75 offen offset:{1024*n} {DSC} lds")
            else:
                b, u = n // 3, n % 3
                if u == 0:
                    a(f"s_add_u32 m0, s{SM0}, {sl*SLOT + 3072*b}")
                    a(f"s_add_u32 s75, s{SD_}, {s*SLOT + 3072*b}")
                if "nod" in C.abl: t = NULL
                else: t = a.vm(f"buffer_load_dwordx4 v3, s[24:27], s75 offen offset:{1024*u} {DSC} lds")
        ltok[ld] = t
    def ndma(ld): return 3 if ld == ("D", 13) else 6
    a("s_waitcnt vmcnt(0)")
    a.vm_issued = a.vm_done = 0
    a("s_barrier")
    stamp(a, 7)
    a("s_cmp_lg_u32 s36, 0")
    a("s_cbranch_scc1 F_j1")
    a(f"s_mul_i32 s74, s7, {C.fs1}")
    a(f"s_add_u32 s74, s74, {FL1}")
    flag_store(a, VT, 74)
    a("F_j1:")
    a.vm_issued = a.vm_done = 0
    if C.stop == "p1": return
    for n in range(6): dma(("W", 2), n)
    a("s_cmp_lg_u32 s36, 0")
    a("s_cbranch_scc1 F_j2")
    a(f"s_mov_b32 s74, {FL1}")
    sv = a.vm_done
    poll(a, [(VP + 3, VP, "s74", 0), (VP + 4, VP + 2, "s74", 0), (VP + 5, VP + 1, "s74", 0)])
    a.vm_done = sv
    a("F_j2:")
    a("s_barrier")
    stamp(a, 8)
    for c in range(3):
        for n in range(6): dma(("X", c), n)
    mf = []
    frags = []
    Mg = {}; Mst = {}
    for si, (g, c) in enumerate(WST):
        if c == 0: Mg[g] = len(mf)
        Mst[("W", si)] = len(mf)
        nk = 3 if g < 4 else 6
        for kl in range(nk):
            ks = nk * c + kl
            tiles = [(0, 0), (0, 1), (1, 0), (1, 1)] if g < 4 else [(0, 2), (1, 2)]
            for ti, (mat, u) in enumerate(tiles):
                n = len(frags)
                frags.append((("W", si), mat * 12288 + kl * (4096 if g < 4 else 2048), AA + 3 * u, "tr" if g < 4 else "trh", len(mf)))
                for t in range(4):
                    mf.append((("v", acc_of(g, ti, t)), ("v", AR + 4 * (n % NR)), xreg(4 * ks + t), ks == 0, [("f", n), ("x", 4 * ks + t)]))
            if g == 0:
                for t in range(2): mf.append((("v", CSR + 4 * t), ("v", ONES), xreg(4 * ks + t), ks == 0, []))
                for t in range(2): mf.append((("v", CSR + 8 + 4 * t), xreg(4 * ks + t), xreg(4 * ks + t), ks == 0, []))
    M5 = len(mf)
    hreg = xreg
    A2 = ACC + 96
    def acc2(z, st): return HB + 8 * z + 4 * st if z < 7 else A2 + 8 * st + 4 * (z - 7)
    huse = {}
    if C.stop != "g1":
        for nd, (kap, z) in enumerate(g2_order()):
            n = len(frags)
            if nd % 24 == 0: Mst[("D", nd // 24)] = len(mf)
            if (kap, z) == (C.ka, 5): MS3 = len(mf)
            if (kap, z) == (0, 7): M6 = len(mf)
            huse.setdefault(kap, len(mf))
            frags.append((("D", nd // 24), (nd % 24) * 1024, DA, "lin", len(mf)))
            for st in range(2):
                mf.append((("v", acc2(z, st)), ("v", AR + 4 * (n % NR)), hreg(2 * kap + st), kap == 0, [("f", n | 1), ("h", 2 * kap + 1)]))
    NM = len(mf)
    tok = {}
    lastread = {}
    W = lambda s: ("W", s); X = lambda s: ("X", s)
    bars = [(-100, [X(0), W(0), W(1), W(2)], []), (12, [X(1)], [X(0)]), (36, [X(2)], [X(1)]), (64, [], [X(2), W(0)]),
            (100, [X(3)], []), (124, [W(3)], [X(3), W(1)]), (160, [X(4), W(4)], []), (184, [], [X(4), W(2)]),
            (220, [X(5), W(5)], []), (244, [], [X(5), W(3)])]
    seq = [W(s) for s in range(len(WST))] + ([("D", s) for s in range(14)] if C.stop != "g1" else [])
    for i in range(6, len(seq)):
        bars.append((Mst[seq[i]] - 18, [seq[i]], [seq[i - 2]]))
    queue = [X(3), W(3), X(4), W(4), X(5), W(5)] + seq[6:]
    opened = {}
    freel = []
    extra_wait = {}
    post = {}
    for bi, (pos, opens, frees) in enumerate(bars):
        for o in opens: opened[o] = pos
        def mk(bi=bi, opens=opens, frees=frees):
            def f():
                toks = [ltok[o] for o in opens] + [lastread[x] for x in frees] + [fn() for fn in extra_wait.get(bi, [])]
                a.wait(*toks)
                if not ("nobar" in C.abl and bi > 12): a("s_barrier")
                if bi in post: post[bi]()
            return f
        add(pos, mk())
        nxt = bars[bi + 1][0] if bi + 1 < len(bars) else pos + 40
        todo = []
        freel.extend(slot[fr] for fr in frees)
        for _ in range(max(1, len(frees))):
            if queue and freel and pos >= Mst.get(queue[0], 0) - 18 - 48 * C.maxlead.get(queue[0], 99):
                ld = queue.pop(0); slot[ld] = freel.pop(0)
                todo += [(ld, n) for n in range(ndma(ld))]
        span = min(nxt - pos - 2, 42)
        for k, (ld, n) in enumerate(todo):
            add(pos + 1.5 + k * span / len(todo), (lambda ld=ld, n=n: dma(ld, n)))
    assert not queue
    def bar_after(p):
        for bi, b in enumerate(bars):
            if b[0] >= p: return bi
    for n, (ld, off, areg, kind, m0_) in enumerate(frags):
        r = AR + 4 * (n % NR)
        la = 4 if kind != "lin" else 6
        at = frags[n - la][4] if n >= la else -50 + n
        if n >= NR: at = max(at, frags[n - NR + 1][4])
        at = max(at, opened[ld] + 0.1)
        def mk(n=n, ld=ld, off=off, areg=areg, kind=kind, r=r, h=0):
            def f():
                sl = slot[ld]
                o = (sl % 2) * SLOT + off
                if "nord" in C.abl and n > 80: t = Tok("lg", 0)
                elif kind != "lin": t = a.lg(f"ds_read_b64_tr_b16 v[{r+2*h}:{r+2*h+1}], v{areg + sl//2} offset:{o + (2048 if kind == 'tr' else 1024)*h}")
                else: t = a.lg(f"ds_read_b128 v[{r}:{r+3}], v{areg + sl//2} offset:{o}")
                tok[("f", n)] = t; lastread[ld] = t
            return f
        add(at + 0.2, mk())
        if kind != "lin": add(at + (1.2 if at >= 0 else 0.3), mk(h=1))
    for c in range(6):
        k = 0
        for kl in range(3):
            for t in range(4):
                for h in range(2):
                    i = 4 * (3 * c + kl) + t
                    def mk(c=c, kl=kl, t=t, h=h, i=i):
                        def f():
                            sl = slot[X(c)]
                            f_, r = xreg(i)
                            tk = a.lg(f"ds_read_b64_tr_b16 {f_}[{r+2*h}:{r+2*h+1}], v{XA + 3*t + sl//2} offset:{(sl%2)*SLOT + kl*8192 + 4096*h}")
                            tok[("x", i)] = tk; lastread[X(c)] = tk
                        return f
                    if c == 0: at = -60 + k if k < 8 else (k - 8) * 0.6
                    else: at = opened[X(c)] + 0.5 + k * 0.8
                    add(at, mk()); k += 1
    def check(loads, tk):
        S_ = label("SLOW"); B_ = label("BACK")
        a.wait(tk)
        if len(loads) == 1:
            a(f"v_cmp_ne_u32 vcc, s3, v{loads[0][0]}")
        else:
            for vt, *_ in loads: a(f"v_xor_b32 v{vt}, s3, v{vt}")
            a(f"v_or_b32 v{loads[0][0]}, v{loads[0][0]}, v{loads[1][0]}")
            a(f"v_cmp_ne_u32 vcc, 0, v{loads[0][0]}")
        a(f"s_cbranch_vccnz {S_}")
        a(f"{B_}:")
        slow(f"{S_}:")
        poll(slow, loads)
        slow(f"s_branch {B_}")
    def flagload(loads, key):
        def f():
            for vt, va, so, imm in loads:
                tok[key] = a.vm(f"buffer_load_dword v{vt}, v{va}, s[24:27], {so} offen offset:{imm} sc1")
        return f
    hl = [(VP + 3, VP, "s68", 0), (VP + 4, VP, "s69", 0)]
    def hl_set():
        a(f"s_mov_b32 s68, {FL1 + 144*C.fs1}")
        a(f"s_mov_b32 s69, {FL1 + 192*C.fs1}")
    add(104, hl_set); add(105, flagload(hl, "hl"))
    add(200, lambda: check(hl, tok["hl"]))
    def ep_write():
        L = label("EPW")
        a("s_or_b32 s74, s7, s36")
        a(f"s_cbranch_scc1 {L}")
        a(f"s_mov_b32 s74, {EP_OFF}")
        sv_ = a.vm_issued
        flag_store(a, VP + 3, 74)
        a.vm_issued = sv_
        a(f"{L}:")
    add(201.5, ep_write)
    for j in range(4):
        def f(j=j):
            if j == 0: a(f"s_lshl_b32 s74, s{SFL}, 2")
            a(f"s_add_u32 s74, s74, {CS_OFF if j == 0 else 2*F*4}")
            tok["cs"] = a.vm(f"buffer_load_dwordx4 v[{CT+4*j}:{CT+4*j+3}], v{VCS}, s[24:27], s74 offen sc1")
        add(202.6 + 0.01 * j, f)
    for j in range(4):
        def f(j=j):
            a.wait(tok["cs"])
            a(f"v_add_f32 v{CT+j}, v{CT+j}, v{CT+4+j}")
            a(f"v_add_f32 v{CT+8+j}, v{CT+8+j}, v{CT+12+j}")
            a(f"v_add_f32 v{CT+j}, v{CT+j}, v{CT+8+j}")
        add(300.6 + 2 * j, f)
    def f(): tok["csw"] = a.lg(f"ds_write_b128 v{VCW}, v[{CT}:{CT+3}]")
    add(310.6, f)
    extra_wait.setdefault(bar_after(320), []).append(lambda: tok["csw"])
    add(330.6, lambda: a(f"v_mov_b32 v{VSW2}, v{VSW}"))
    M1 = Mg[1]
    fin = []
    for t in range(2):
        sm, gr = CSR + 4 * t, CSR + 8 + 4 * t
        fin.append(f"v_cndmask_b32 v{gr}, v{gr}, v{gr+1}, s[32:33]")
        fin.append(f"v_cndmask_b32 v{gr+2}, v{gr+2}, v{gr+3}, s[32:33]")
        fin.append(f"v_mul_f32 v{sm}, {-1.0/576!r}, v{sm}")
        fin.append(f"v_cndmask_b32 v{gr}, v{gr}, v{gr+2}, s[34:35]")
        fin.append(f"v_mov_b32 v{MEAN+t}, v{sm}")
        fin.append(f"v_mul_f32 v{gr}, {1.0/576!r}, v{gr}")
        fin.append(f"v_fma_f32 v{gr}, -v{sm}, v{sm}, v{gr}")
        fin.append(f"v_max_f32 v{gr}, 0, v{gr}")
        fin.append(f"v_add_f32 v{gr}, 0x3727c5ac, v{gr}")
        fin.append(f"v_rcp_f32 v{sm+1}, v{gr}")
    for i, s_ in enumerate(fin): add(M1 + 5.6 + i, (lambda s_=s_: a(s_)))
    for t in range(2):
        def f(t=t): tok["stw"] = a.lg(f"ds_write_b64 v{VSW2}, v[{CSR+4*t}:{CSR+4*t+1}] offset:{128*t}")
        add(M1 + 27.6 + 0.1 * t, f)
    bi = bar_after(M1 + 29)
    extra_wait.setdefault(bi, []).append(lambda: tok["stw"])
    for t in range(2):
        def f(t=t): tok["str"] = a.lg(f"ds_read_b32 v{MEAN+2+t}, v{VSR} offset:{128*t}")
        add(bars[bi][0] + 2.6 + t, f)
    ep0_start = bars[bi][0] + 5
    def ep_items(g):
        items = []
        nt = 2 if g < 4 else 1
        for j in range(2 * nt):
            def f(j=j):
                if g < 4: base, off = VC, g * 256 + (j % 2) * 64 + (j // 2) * 1280
                else: base, off = VC + 1, j * 1280
                tok[("c", g)] = a.lg(f"ds_read_b128 v[{CSR+4*j}:{CSR+4*j+3}], v{base} offset:{off}")
            items.append(f)
        for t in range(4):
            A_ = [acc_of(g, j, t) for j in range(2 * nt)]
            o = ET + 4 * (t % 2)
            def mk(s_, w=False):
                def f():
                    if "noep" in C.abl: return
                    if w: a.wait(tok[("c", g)], tok["str"])
                    a(s_)
                return f
            for j in range(2 * nt):
                for r in range(4): items.append(mk(f"v_fmac_f32 v{A_[j]+r}, v{MEAN+t}, v{CSR+4*j+r}", True))
            for j in range(nt):
                for r in range(4): items.append(mk(f"v_max_f32 v{A_[j]+r}, 0, v{A_[j]+r}"))
            for j in range(nt):
                for r in range(4): items.append(mk(f"v_mul_f32 v{A_[j]+r}, v{A_[j]+r}, v{A_[j+nt]+r}"))
            for j in range(nt):
                for r in range(2): items.append(mk(f"v_cvt_pk_bf16_f32 v{o+2*j+r}, v{A_[j]+2*r}, v{A_[j]+2*r+1}"))
            def st(t=t, o=o):
                if g < 4:
                    if g == 2: a(f"s_add_u32 s{SHS+t}, s{SHS+t}, 4096")
                    tk = a.vm(f"buffer_store_dwordx4 v[{o}:{o+3}], v3, s[24:27], s{SHS+t} offen offset:{(g%2)*2048} sc1")
                else:
                    a(f"s_add_u32 s72, s{SHS+t}, s{SHH}")
                    tk = a.vm(f"buffer_store_dwordx2 v[{o}:{o+1}], v{VH8}, s[24:27], s72 offen sc1")
                tok[("hs", g, t)] = tk
                eppos[(g, t)] = cur[0]
            items.append(st)
        return items
    eppos = {}; cur = [0]
    Mend = {g: (Mg[ORDER[i + 1]] if i < 4 else M5) for i, g in enumerate(ORDER)}
    for g in ORDER:
        st0 = ep0_start if g == 0 else Mend[g] + 3
        for i, it in enumerate(ep_items(g)): addlo(st0 + (0 if i < 4 else 4), it)
    def publish(level):
        def f():
            L = label("PUB")
            a("s_cmp_lg_u32 s36, 0")
            a(f"s_cbranch_scc1 {L}")
            a("s_mov_b64 exec, 1")
            a(f"v_mov_b32 v{VT}, s3")
            a(f"buffer_store_dword v{VT}, v4, s[24:27], s{SFLHO} offen offset:{64*level} sc1")
            a("s_mov_b64 exec, -1")
            a(f"{L}:")
        return f
    if C.stop != "g1":
        M2, M3 = Mg[2], Mg[3]
        for level, (g, p) in enumerate([(4, M2 + 200), (2, M3 + 200), (3, M5 + C.pub3)]):
            bi = bar_after(p)
            extra_wait.setdefault(bi, []).append(lambda g=g: tok[("hs", g, 3)])
            post[bi] = publish(level)
            print("publish", level, "at", bars[bi][0] - M5)
        hat = [M3 + 17 + C.hsp * h if h < 56 else M5 + C.late0 + C.hsp2 * (h - 56) for h in range(72)]
        for level, h0 in enumerate((0, 40, 56)):
            hl2 = [(VT + 1, VFL, f"s{SFLH}", 64 * level)]
            add(int(hat[h0]) - 40.4, flagload(hl2, ("hf", level)))
            add(int(hat[h0]) - 1.4, (lambda hl2=hl2, level=level: check(hl2, tok[("hf", level)])))
        for h in range(72):
            kap, st = h // 2, h % 2
            at = int(hat[h]) + 0.7
            assert at > M3 + 16 * (h // 4 + 1)
            if st and kap % 4 == 3 or kap == 28: print(kap, 'lead', int(huse[kap] - at), end='; ')
            def f(h=h, kap=kap, st=st):
                fb = kap_fb(kap)
                f_, r = hreg(h)
                a(f"s_add_u32 s73, s{SHL+st}, {fb*1024}")
                if "noh" in C.abl: tok[("h", h)] = NULL
                else: tok[("h", h)] = a.vm(f"buffer_load_dwordx4 {f_}[{r}:{r+3}], v3, s[24:27], s73 offen {HSC}")
            add(at, f)
        HR = CSR
        VR1, VR2, R2, VO, VM, VB = AA, AA + 1, AA + 2, AA + 4, AA + 6, AA + 7
        Y = HB
        RB = [ACC, ACC + 16, ACC + 112]
        P0_ = M5 + C.misc0
        def spread(p, txt, guard=None):
            for i, l_ in enumerate(txt.strip().split("\n")):
                def f(l_=l_.strip()):
                    if guard: assert guard in tok
                    if l_.startswith("ds_"): tok["r2"] = a.lg(l_)
                    else: a(l_)
                addlo(p, f)
        spread(P0_, f"""
            s_lshl_b32 s68, s{SRB}, 2
            s_add_u32 s68, s68, s{SCQ}
            s_lshl_b32 s69, s68, 2
            s_add_u32 s69, s69, s36
            s_lshl_b32 s69, s69, 13
            s_add_u32 s69, s69, {PY_OFF}
            s_mul_i32 s68, s68, 196608
            s_lshl_b32 s71, s36, 12
            s_add_u32 s68, s68, s71
            s_add_u32 s68, s68, {PX_OFF}
            s_add_u32 s16, s{SKQ}, 1
            s_and_b32 s16, s16, 3
            s_mul_i32 s16, s16, 49152
            s_add_u32 s16, s16, s68
            s_add_u32 s17, s{SKQ}, 2
            s_and_b32 s17, s17, 3
            s_mul_i32 s17, s17, 49152
            s_add_u32 s17, s17, s68
            s_add_u32 s17, s17, 16384
            s_add_u32 s18, s{SKQ}, 3
            s_and_b32 s18, s18, 3
            s_mul_i32 s18, s18, 49152
            s_add_u32 s18, s18, s68
            s_add_u32 s18, s18, 32768
            s_sub_u32 s19, s{SKQ}, s36
            s_and_b32 s19, s19, 3
            s_lshl_b32 s19, s19, 11
            s_add_u32 s19, s19, s69
            s_mul_i32 s20, s{SKQ}, 49152
            s_add_u32 s20, s20, s68
            s_add_u32 s21, s20, 16384
            s_add_u32 s22, s20, 32768
            s_add_u32 s23, s69, 4096
            v_mov_b32 v{VM}, 0xff
            v_lshrrev_b32 v5, 4, v2
            v_and_b32 v6, 15, v2
            v_lshlrev_b32 v{VR1}, 1, v6
            v_lshl_add_u32 v{VR2}, v5, 14, v{VR1}
            v_lshl_add_u32 v{VR1}, v5, 15, v{VR1}
            s_mul_i32 s37, s{SCQ}, 144
            s_lshl_b32 s38, s{SKQ}, 5
            s_add_u32 s38, s38, s37
            s_add_u32 s37, s37, 128
            s_lshl_b32 s39, s{SRB}, 7
            s_lshl_b32 s71, s36, 5
            s_add_u32 s39, s39, s71
            s_lshl_b32 s71, s39, 1
            s_add_u32 s71, s71, {HT_OFF}
            s_lshl_b32 s32, s38, 12
            s_add_u32 s32, s32, s71
            s_lshl_b32 s33, s37, 12
            s_add_u32 s33, s33, s71
            v_add_u32 v7, s39, v6
            v_mul_u32_u24 v7, 1152, v7
            s_lshl_b32 s38, s38, 1
            s_lshl_b32 s37, s37, 1
            v_lshl_add_u32 v{VO}, v5, 4, v7
            v_add_u32 v{VO}, s38, v{VO}
            v_lshl_add_u32 v{VO+1}, v5, 3, v7
            v_add_u32 v{VO+1}, s37, v{VO+1}
            s_lshl_b32 s71, s36, 8
            s_add_u32 s71, s71, {G1_STX + 4}
            v_lshl_add_u32 v7, v6, 3, s71
            ds_read_b32 v{R2}, v7
            ds_read_b32 v{R2+1}, v7 offset:128
            s_mov_b32 s12, s{POUT}
            s_mov_b32 s13, s{POUT+1}
            s_mov_b32 s14, {SD_BYTES}
            s_mov_b32 s15, 0x00020000
            s_mov_b32 s34, {16*1152}
            """ + "\n".join(f"v_mov_b32 v{HR+j}, 0" for j in range(24)), ("hs", 3, 3))
        def done_setup(): tok["setup"] = NULL
        addlo(P0_, done_setup)
        for j in range(12):
            for st in range(2):
                def f(j=j, st=st):
                    assert "setup" in tok
                    if j < 8: va, sreg, r = VR1, 32, HR + 8 * st + j
                    else: va, sreg, r = VR2, 33, HR + 16 + 4 * st + j - 8
                    if "nohr" not in C.abl: tok["hr"] = a.vm(f"buffer_load_short_d16_hi v{r}, v{va}, s[24:27], s{sreg} offen offset:{32*st} sc1")
                    if st == 1: a(f"s_add_u32 s{sreg}, s{sreg}, 4096")
                add(MS3 + 6.6 + 4 * (2 * j + st), f)
        k1 = k2 = 0
        for z in range(7):
            for st in range(2):
                r = acc2(z, st)
                if z < 5: at = MS3 + 4.6 + C.ssp * k1; k1 += 1
                else: at = M6 + 4.6 + C.ssp * k2; k2 += 1
                def f(r=r):
                    assert "setup" in tok
                    a(f"v_bfi_b32 v{r}, v{VM}, s3, v{r}")
                    a(f"v_bfi_b32 v{r+2}, v{VM}, s3, v{r+2}")
                add(at, f)
                def f(z=z, st=st, r=r):
                    if z == 4: sreg, imm = 19, st * 1024
                    else:
                        zz = z if z < 4 else z - 1
                        sreg, imm = 16 + zz // 2, (2 * st + zz % 2) * 1024
                    if "nops" not in C.abl: a.vm(f"buffer_store_dwordx4 v[{r}:{r+3}], v3, s[24:27], s{sreg} offen offset:{imm} {'' if 'psplain' in C.abl else 'sc1'}")
                add(at + 1, f)
        def rx(em, e, j): return em(f"buffer_load_dwordx4 v[{RB[e]+4*j}:{RB[e]+4*j+3}], v3, s[24:27], s{20+e} offen offset:{1024*j} sc1")
        def ry(em):
            for sl_ in range(1, 4):
                for st in range(2):
                    r = Y + 8 * (sl_ - 1) + 4 * st
                    em(f"buffer_load_dwordx4 v[{r}:{r+3}], v3, s[24:27], s{69 if sl_ == 1 else 23} offen offset:{(sl_%2)*2048 + st*1024} sc1")
        for e in range(3):
            for j in range(4):
                add((M6 + C.rx1 + 3 * (4 * e + j) if e < 2 else M6 + C.rx2 + 2 * j) + 0.6, (lambda e=e, j=j: rx(a.vm, e, j) if "norx" not in C.abl else None))
        def f():
            L = label("RY")
            a(f"s_cmp_lg_u32 s36, s{SKQ}")
            a(f"s_cbranch_scc1 {L}")
            ry(a)
            a(f"{L}:")
        add(M6 + C.rx1 + 25.6, f)
    hi.sort(key=lambda x: (x[0], x[1]))
    hi_i = 0; lo_i = 0
    while hi_i < len(hi) and hi[hi_i][0] < 0:
        hi[hi_i][2](); hi_i += 1
    over = 0
    for m, (d, A, B, first, keys) in enumerate(mf):
        cur[0] = m
        for g, need in {4: [(0, 1)], 2: [(0, 3), (1, 1)], 3: [(1, 3), (4, 3)]}.items():
            if m == Mg[g]:
                for nd_ in need: assert ("hs",) + nd_ in tok, f"epilogue {nd_} not finished at start of {g}"
        if m == M5: assert ("hs", 2, 3) in tok
        a.wait(*[tok[k] for k in keys])
        src = "0" if first else rr(*d)
        a(f"v_mfma_f32_16x16x32_bf16 {rr(*d)}, {rr(*A)}, {rr(*B)}, {src}")
        n0 = len(a.lines)
        while hi_i < len(hi) and hi[hi_i][0] < m + 1:
            hi[hi_i][2](); hi_i += 1
        nxt_wait = 0
        if m + 1 < NM:
            for k in mf[m + 1][4]:
                t = tok[k]
                if (t.kind == "lg" and t.idx > a.lg_done) or (t.kind == "vm" and t.idx > a.vm_done): nxt_wait = 1
        while lo_i < len(lo) and lo[lo_i][0] <= m and len(a.lines) - n0 + nxt_wait < (C.cap3 if M5 <= m < M5 + 150 else 2):
            lo[lo_i][1](); lo_i += 1
        over += max(0, len(a.lines) - n0 + nxt_wait - 2)
        if C.stop != "g1":
            for si_, e_ in enumerate(C.fst):
                if m + 1 == eval(e_): stamp(a, 9 + si_)
    print({k: v - M5 for k, v in eppos.items() if k[1] in (1, 3)}, {g: v - M5 for g, v in Mg.items()})
    print("mfma", NM, "overfull slots", over, "lo left", len(lo) - lo_i)
    assert hi_i == len(hi)
    if lo_i < len(lo): a("s_nop 7")
    while lo_i < len(lo):
        lo[lo_i][1](); lo_i += 1
    if C.stop == "g1": return
    def tagchk(em, regs):
        for i, r in enumerate(regs):
            if i == 0: em(f"v_xor_b32 v{VB}, s3, v{r}")
            else: em(f"v_bitop3_b32 v{VB}, v{VB}, v{r}, s3 bitop3:0xf6")
        em(f"v_and_b32 v{VB}, v{VM}, v{VB}")
        em(f"v_cmp_ne_u32 vcc, 0, v{VB}")
    def guarded(regs, reload):
        S_ = label("XS"); B_ = label("XB"); L_ = label("XL")
        tagchk(a, regs)
        if not C.abl & {"nops", "norx", "psplain"}: a(f"s_cbranch_vccnz {S_}")
        a(f"{B_}:")
        slow(f"{S_}:")
        slow(f"s_mov_b32 s97, {SPIN}")
        slow(f"{L_}:")
        reload(slow)
        slow("s_waitcnt vmcnt(0)")
        tagchk(slow, regs)
        slow(f"s_cbranch_vccz {B_}")
        slow("s_sub_u32 s97, s97, 1")
        slow(f"s_cbranch_scc0 {L_}")
        slow(f"s_branch {B_}")
    a("s_waitcnt vmcnt(4) lgkmcnt(0)")
    a(f"s_cmp_lg_u32 s36, s{SKQ}")
    a("s_cbranch_scc1 F_n8")
    guarded([Y + 2 * i for i in range(12)], ry)
    O8 = acc2(4, 0)
    for j in range(8):
        a(f"v_add_f32 v{Y+j}, v{Y+j}, v{Y+8+j}")
        a(f"v_add_f32 v{Y+16+j}, v{Y+16+j}, v{O8+j}")
    for j in range(8): a(f"v_add_f32 v{Y+j}, v{Y+j}, v{Y+16+j}")
    for j in range(8): a(f"v_fmac_f32 v{HR+16+j}, v{Y+j}, v{R2+j//4}")
    for j in range(4): a(f"v_cvt_pk_bf16_f32 v{Y+j}, v{HR+16+2*j}, v{HR+17+2*j}")
    a("s_waitcnt vmcnt(0)")
    a(f"buffer_store_dwordx2 v[{Y}:{Y+1}], v{VO+1}, s[12:15], 0 offen")
    a(f"buffer_store_dwordx2 v[{Y+2}:{Y+3}], v{VO+1}, s[12:15], s34 offen")
    a("F_n8:")
    guarded([RB[e] + 2 * i for e in range(2) for i in range(8)], lambda em: [rx(em, e, j) for e in range(2) for j in range(4)])
    for j in range(16): a(f"v_add_f32 v{RB[0]+j}, v{RB[0]+j}, v{RB[1]+j}")
    for j in range(16): a(f"v_add_f32 v{A2+j}, v{A2+j}, v{RB[0]+j}")
    a(f"s_cmp_eq_u32 s36, s{SKQ}")
    a("s_cbranch_scc1 F_j8")
    a("s_waitcnt vmcnt(0)")
    a("F_j8:")
    guarded([RB[2] + 2 * i for i in range(8)], lambda em: [rx(em, 2, j) for j in range(4)])
    for j in range(16): a(f"v_add_f32 v{A2+j}, v{A2+j}, v{RB[2]+j}")
    for j in range(16): a(f"v_fmac_f32 v{HR+j}, v{A2+j}, v{R2+j//8}")
    for j in range(8): a(f"v_cvt_pk_bf16_f32 v{ACC+j}, v{HR+2*j}, v{HR+2*j+1}")
    a(f"buffer_store_dwordx4 v[{ACC}:{ACC+3}], v{VO}, s[12:15], 0 offen")
    a(f"buffer_store_dwordx4 v[{ACC+4}:{ACC+7}], v{VO}, s[12:15], s34 offen")
```

```python
from common import *
from pa import *
from ffn import *
import common

def kernel():
    common._lab[0] = 0
    a = Asm(); slow = Asm()
    prologue(a)
    a("s_cmp_ge_u32 s2, 192")
    a("s_cbranch_scc1 NOP0")
    p0(a, slow)
    if True:
        a("s_cmp_ge_u32 s2, 144")
        a("s_cbranch_scc1 CSUM")
        wpre = [(lambda c=c, n=n: wdma(a, 0, c, 4 + c, n)) for c in range(2) for n in range(6)]
        conv(a, slow, wpre, setup_early)
        a("s_branch JOIN")
        a("NOP0:")
        a("s_waitcnt lgkmcnt(0)")
        stamp(a, 1)
        ep_load(a)
        role_issue(a)
        a("s_cmp_ge_u32 s2, 216")
        a("s_cbranch_scc1 PACK")
        a("s_cmp_ge_u32 s2, 208")
        a("s_cbranch_scc1 CSUM")
        qissue(a)
        a("s_waitcnt vmcnt(0)")
        a("CSUM:")
        a.vm_issued = a.vm_done = a.lg_issued = a.lg_done = 0
        colsum(a, slow)
        a("PACK:")
        a.vm_issued = a.vm_done = a.lg_issued = a.lg_done = 0
        pack(a, slow)
        a("HELP_done:")
        a.vm_issued = a.vm_done = a.lg_issued = a.lg_done = 0
        role_get(a)
        setup_early(a)
        for c in range(2):
            for n in range(6): wdma(a, 0, c, 4 + c, n)
        a("JOIN:")
        a("s_waitcnt lgkmcnt(0)")
        a.lg_issued = a.lg_done = 0
        setup_late(a)
        ffn(a, slow)
    stamp_flush(a, 15, 8)
    a("END:")
    a("s_endpgm")
    a.lines += slow.lines
    return a, dict(grid=256, block=256, lds=LDS_TOTAL, vgpr=512, accum=256)

if __name__ == "__main__":
    for stop in ("p1", "g1", None):
        C.stop = stop
        build(*kernel(), f"m_{stop or 'all'}.s")
    C.stamps = True
    build(*kernel(), "m_st.s")
    C.dbg = 37
    build(*kernel(), "m_dbg.s")
    C.dbg = None
    C.stamp_ins = "s_memtime"
    build(*kernel(), "m_cyc.s")
```

```python
from common import *

KC_STRIDE = 4160
K1_U = 4 * 4 * KC_STRIDE
K1_ST = K1_U + 4 * 4608
K1_LDS = K1_ST + 16384
RING = 16384
SLOT = 24576
LDS_TOTAL = 163840
P0L = RING + 4 * SLOT
P0I = 1040
P0S = 14 * P0I
ROLE_LDS = 112640
QL = 16384

PQ, PK, PV, PSH, PSK, PSD, PBX, PWG, PWU, PWD, POUT, PDBG, PWS = range(40, 66, 2)

def prologue(a):
    a("s_cmp_ge_u32 s2, 256")
    a("s_cbranch_scc1 END")
    stamp_init(a)
    a("s_load_dwordx16 s[40:55], s[0:1], 0")
    a("s_load_dwordx8 s[56:63], s[0:1], 64")
    a("s_load_dwordx2 s[64:65], s[0:1], 96")
    a("v_lshrrev_b32 v1, 6, v0")
    a("v_and_b32 v2, 63, v0")
    a("v_readfirstlane_b32 s36, v1")
    a("v_lshlrev_b32 v3, 4, v2")
    a("v_mov_b32 v4, 0")
    a("s_mov_b32 s7, s2")
    a("s_mov_b32 s69, 0xffff0000")

def ep_load(a):
    srd(a, 24, PWS, PWS + 1, WS_BYTES)
    a(f"s_mov_b32 s6, {EP_OFF}")
    a("buffer_load_dword v62, v4, s[24:27], s6 offen sc1")

def ep_get(a):
    a("v_readfirstlane_b32 s3, v62")
    a("s_add_u32 s3, s3, 1")

def ticket(a):
    a("s_lshl_b32 s6, s4, 5")
    a("s_mov_b64 exec, 1")
    a("v_mov_b32 v58, 1")
    a("buffer_atomic_add v58, v4, s[72:75], s6 offen sc0 sc1")
    a("s_mov_b64 exec, -1")

def role_issue(a):
    L = label("RI")
    a("s_cmp_lg_u32 s36, 3")
    a(f"s_cbranch_scc1 {L}")
    a("s_getreg_b32 s4, hwreg(HW_REG_XCC_ID, 0, 3)")
    srd(a, 72, PDBG, PDBG + 1, 256)
    ticket(a)
    a(f"{L}:")

def role_put(a, slow):
    L = label("RP"); OK = label("RPok"); S_ = label("RPs"); LP = label("RPl")
    a("s_cmp_lg_u32 s36, 3")
    a(f"s_cbranch_scc1 {L}")
    a("v_readfirstlane_b32 s6, v58")
    a(f"v_mov_b32 v59, {ROLE_LDS}")
    a("s_cmp_lt_u32 s6, 32")
    a(f"s_cbranch_scc0 {S_}")
    a(f"{OK}:")
    a("s_lshl_b32 s6, s6, 3")
    a("s_add_u32 s6, s6, s4")
    a("v_mov_b32 v58, s6")
    a("ds_write_b32 v59, v58")
    a("s_waitcnt lgkmcnt(0)")
    a(f"{L}:")
    slow(f"{S_}:")
    srd(slow, 72, PDBG, PDBG + 1, 256)
    slow("s_mov_b32 s5, 7")
    slow(f"{LP}:")
    slow("s_add_u32 s4, s4, 1")
    slow("s_and_b32 s4, s4, 7")
    ticket(slow)
    slow("s_waitcnt vmcnt(0)")
    slow("v_readfirstlane_b32 s6, v58")
    slow("s_cmp_lt_u32 s6, 32")
    slow(f"s_cbranch_scc1 {OK}")
    slow("s_sub_u32 s5, s5, 1")
    slow("s_cmp_lg_u32 s5, 0")
    slow(f"s_cbranch_scc1 {LP}")
    slow("s_and_b32 s4, s2, 7")
    slow("s_lshr_b32 s6, s2, 3")
    slow(f"s_branch {OK}")

def role_get(a):
    a(f"v_mov_b32 v59, {ROLE_LDS}")
    a("ds_read_b32 v58, v59")
    a("s_waitcnt lgkmcnt(0)"); a.lg_done = a.lg_issued
    a("v_readfirstlane_b32 s6, v58")
    a("s_and_b32 s28, s6, 7")
    a("s_lshr_b32 s29, s6, 3")

def kload(a):
    a("s_lshl_b32 s34, s2, 2")
    a("s_add_u32 s34, s34, s36")
    a("s_lshl_b32 s35, s34, 12")
    srd(a, 12, PSK, PSK + 1, SD_BYTES)
    a("buffer_load_dwordx2 v[60:61], v4, s[12:15], s35 offen")
    a(f"s_mul_i32 s30, s36, {4*KC_STRIDE}")
    a("s_add_u32 s66, s35, 2")
    for z in range(4):
        for r in range(2):
            a(f"s_add_u32 m0, s30, {r*KC_STRIDE+32}")
            a("s_nop 0")
            a(f"buffer_load_dwordx4 v3, s[12:15], {('s35', 's66')[r]} offen offset:{1024*z} {C.ntk[r]} lds")

def qissue(a):
    a("s_sub_u32 s34, s2, 144")
    srd(a, 16, PQ, PQ + 1, SD_BYTES)
    a("s_mul_i32 s33, s34, 36864")
    a("s_mul_i32 s31, s36, 9216")
    a("s_add_u32 s33, s33, s31")
    for n in range(9):
        if n % 4 == 0:
            a(f"s_add_u32 m0, s31, {QL + n*1024}")
            a(f"s_add_u32 s30, s33, {n*1024}")
        a(f"buffer_load_dwordx4 v3, s[16:19], s30 offen offset:{(n%4)*1024} {C.ntkv} lds")

def p0(a, slow):
    VO_, CH, RD, OUT = 64, 71, 72, 75
    WR, WP, KR, VR_, T, KS, UO = 76, 82, 98, 116, 128, 136, 144
    a("s_lshr_b32 s29, s2, 3")
    a("s_and_b32 s5, s29, 3")
    a("s_and_b32 s28, s2, 7")
    a("s_lshl_b32 s28, s28, 2")
    a("s_add_u32 s5, s5, s28")
    a("s_lshr_b32 s29, s29, 2")
    a("s_and_b32 s70, s36, 1")
    a("s_lshr_b32 s71, s36, 1")
    a("v_mul_u32_u24 v5, 43, v2")
    a("v_lshrrev_b32 v5, 9, v5")
    a("v_mul_u32_u24 v6, 12, v5")
    a("v_sub_u32 v6, v2, v6")
    a(f"s_mul_i32 s33, s5, {64*1152}")
    a("s_mul_i32 s37, s29, 192")
    a("s_add_u32 s33, s33, s37")
    a(f"s_mul_i32 s37, s70, {35*1152}")
    a("s_add_u32 s33, s33, s37")
    a(f"s_sub_u32 s33, s33, {4*1152}")
    a("v_mul_u32_u24 v5, 1152, v5")
    a("v_lshl_add_u32 v5, v6, 4, v5")
    a("v_cmp_le_u32 vcc, 60, v2")
    a("v_mov_b32 v6, 0x40000000")
    a(f"s_mul_i32 s38, s36, {7*P0I}")
    a("v_cndmask_b32 v5, v5, v6, vcc")
    a(f"v_add_u32 v{VO_}, s33, v5")
    for n in range(1, 7): a(f"v_add_u32 v{VO_+n}, {5*1152*n}, v{VO_}")
    a(f"s_add_u32 s38, s38, {P0L}")
    a("s_lshl_b32 s28, s29, 2")
    a("s_add_u32 s28, s28, s36")
    a("s_mul_i32 s37, s28, 24")
    a("v_and_b32 v7, 7, v2")
    a("v_mov_b32 v32, 0")
    a(f"v_add_u32 v{CH}, s37, v7")
    a(f"v_lshlrev_b32 v6, 3, v{CH}")
    a("s_cmp_eq_u32 s71, 0")
    a(f"s_mov_b32 s10, {SD_BYTES}")
    a("s_mov_b32 s11, 0x00020000")
    a("s_mov_b32 m0, s38")
    a("s_waitcnt lgkmcnt(0)")
    stamp(a, 1)
    a(f"s_cselect_b32 s8, s{PK}, s{PV}")
    a(f"s_cselect_b32 s9, s{PK+1}, s{PV+1}")
    for n in range(7):
        if n: a(f"s_add_u32 m0, s38, {P0I*n}")
        if n == 1: ep_load(a)
        elif n == 2: srd(a, 20, PSH, PSH + 1, D * 8)
        elif 3 <= n < 6: a(f"buffer_load_dwordx2 v[{WR+2*(n-3)}:{WR+2*(n-3)+1}], v6, s[20:23], 0 offen offset:{64*(n-3)}")
        elif n: a("s_nop 0")
        a(f"buffer_load_dwordx4 v{VO_+n}, s[8:11], 0 offen {C.ntkv} lds")
    a("s_cmp_lt_u32 s2, 144")
    a("s_cbranch_scc1 P0_k")
    qissue(a)
    role_issue(a)
    a("s_branch P0_j1")
    a("P0_k:")
    kload(a)
    role_issue(a)
    conv_setup(a)
    a("P0_j1:")
    a(f"v_mul_u32_u24 v10, {C.fs0}, v2")
    a(f"v_and_b32 v11, {31*C.fs0}, v10")
    a("v_lshrrev_b32 v8, 4, v2")
    a("v_bfe_u32 v9, v2, 1, 1")
    a("v_lshlrev_b32 v8, 4, v8")
    a("v_lshl_add_u32 v8, v9, 3, v8")
    a("v_bfe_u32 v9, v2, 2, 2")
    a("v_add_u32 v8, v8, v9")
    a("v_and_b32 v9, 1, v2")
    a("s_mul_i32 s37, s36, 48")
    a(f"s_add_u32 s37, s37, {P0L}")
    a("v_lshl_add_u32 v9, v9, 3, s37")
    for h in range(3):
        if h: a("v_add_u32 v8, 4, v8")
        a(f"v_mul_u32_u24 v{T}, 205, v8")
        a(f"v_lshrrev_b32 v{T}, 10, v{T}")
        a(f"v_mul_u32_u24 v{T}, {P0I - 960}, v{T}")
        a(f"v_mul_u32_u24 v{RD+h}, 192, v8")
        a(f"v_add3_u32 v{RD+h}, v{RD+h}, v{T}, v9")
    a("v_lshrrev_b32 v9, 3, v2")
    a("s_lshl_b32 s33, s5, 7")
    a(f"v_lshl_add_u32 v{OUT}, v9, 4, s33")
    a(f"v_lshl_add_u32 v{OUT}, v{CH}, 12, v{OUT}")
    a("s_lshl_b32 s33, s28, 5")
    a("s_add_u32 s33, s33, s5")
    a(f"s_mul_i32 s33, s33, {C.fs0}")
    a(f"s_add_u32 s33, s33, {FL0}")
    a("s_mov_b32 s70, 0x0000ffff")
    a("s_waitcnt vmcnt(9) lgkmcnt(0)")
    a.lg_issued = a.lg_done = 0
    a("s_barrier")
    stamp(a, 2)
    tk = []
    for e in range(3):
        for h in range(3): a.lg(f"ds_read_b64_tr_b16 v[{KR+6*e+2*h}:{KR+6*e+2*h+1}], v{RD+h} offset:{16*e}")
        for h in range(2): t = a.lg(f"ds_read_b64_tr_b16 v[{VR_+4*e+2*h}:{VR_+4*e+2*h+1}], v{RD+h+1} offset:{P0S + 16*e}")
        tk.append(t)
    for e in range(3):
        w01, w23 = WR + 2 * e, WR + 1 + 2 * e
        b = WP + 5 * e
        a(f"v_alignbit_b32 v{b}, v{w23}, v{w23}, 16")
        a(f"v_alignbit_b32 v{b+1}, v{w01}, v{w01}, 16")
        a(f"v_and_b32 v{b+2}, s69, v{w23}")
        a(f"v_bfi_b32 v{b+3}, s70, v{w23}, v{w01}")
        a(f"v_and_b32 v{b+4}, s70, v{w01}")
    ep_get(a)
    for e in range(3):
        b = WP + 5 * e; k = KR + 6 * e; v = VR_ + 4 * e
        a.wait(tk[e])
        for m in range(4):
            a(f"v_dot2_f32_bf16 v{KS+2*m}, v{k+m}, v{b+2}, 0")
            a(f"v_dot2_f32_bf16 v{KS+2*m+1}, v{k+m+1}, v{b}, 0")
        for m in range(4):
            a(f"v_dot2_f32_bf16 v{KS+2*m}, v{k+m+1}, v{b+3}, v{KS+2*m}")
            a(f"v_dot2_f32_bf16 v{KS+2*m+1}, v{k+m+2}, v{b+1}, v{KS+2*m+1}")
        for m in range(4):
            a(f"v_dot2_f32_bf16 v{KS+2*m}, v{k+m+2}, v{b+4}, v{KS+2*m}")
        for m in range(4):
            a(f"v_lshlrev_b32 v{T+2*m}, 16, v{v+m}")
            a(f"v_and_b32 v{T+2*m+1}, s69, v{v+m}")
        for j in reversed(range(8)):
            a(f"v_mul_f32 v{T+j}, v{T+j}, v{KS+j}")
        o = UO + 4 * e
        a(f"s_mov_b32 s37, {UT_OFF + 8*4096*e}")
        for m in range(4):
            a(f"v_cvt_pk_bf16_f32 v{o+m}, v{T+7-2*m}, v{T+6-2*m}")
        a(f"buffer_store_dwordx4 v[{o}:{o+3}], v{OUT}, s[24:27], s37 offen sc1")
    stamp(a, 3)
    a("s_waitcnt vmcnt(0)")
    flag_store(a, 56, 33)
    a.vm_issued = a.vm_done = 0; a.lg_issued = a.lg_done = 0

def conv_setup(a):
    a("s_lshl_b32 s37, s34, 1")
    a("s_and_b32 s38, s37, 0xfffffffc")
    a(f"s_load_dword s39, s[{PSD}:{PSD+1}], s38")
    a("s_mul_i32 s32, s36, 4608")
    a(f"s_add_u32 s32, s32, {K1_U}")
    a("v_and_b32 v5, 15, v2")
    a("v_lshrrev_b32 v6, 4, v2")
    a("v_lshlrev_b32 v7, 5, v5")
    a("v_lshl_add_u32 v7, v6, 3, v7")
    a("v_mov_b32 v12, 0\nv_mov_b32 v13, 0\nv_mov_b32 v14, 0\nv_mov_b32 v15, 0")
    a("v_and_b32 v9, 31, v2")
    a("v_lshl_add_u32 v9, v9, 4, s32")
    a.lg("ds_write_b128 v9, v[12:15]")
    a("v_add_u32 v9, 1, v5")
    a("v_and_b32 v9, 1, v9")
    a("v_lshlrev_b32 v32, 3, v6")
    a("v_sub_u32 v32, v5, v32")
    a("v_sub_u32 v32, v32, v9")
    a("v_add_u32 v32, 25, v32")
    a("v_lshlrev_b32 v32, 1, v32")
    a(f"v_mul_u32_u24 v9, {KC_STRIDE}, v9")
    a("v_add3_u32 v156, v32, v9, s30")
    for k in range(1, 4): a(f"v_add_u32 v{156+k}, {1024*k}, v156")
    a("v_lshrrev_b32 v32, 1, v5")
    a(f"v_mul_u32_u24 v32, {36864-64}, v32")
    a("v_add_u32 v32, v32, v7")
    a("v_lshlrev_b32 v33, 5, v5")
    a("v_lshl_add_u32 v33, v6, 4, v33")
    a("v_add3_u32 v33, v33, s32, 32")
    a("v_lshrrev_b32 v9, 1, v6")
    a("v_lshlrev_b32 v34, 5, v5")
    a("v_lshl_add_u32 v34, v9, 4, v34")
    a("v_and_b32 v9, 1, v6")
    a("v_xor_b32 v9, 1, v9")
    a("v_lshl_add_u32 v34, v9, 3, v34")
    a("v_add_u32 v34, s32, v34")
    a(f"v_lshlrev_b32 v35, 2, v7")
    a(f"v_add_u32 v35, {K1_ST}, v35")
    a("v_lshrrev_b32 v36, 2, v5")
    a("v_and_b32 v37, 3, v5")
    a("v_lshlrev_b32 v38, 4, v36")
    a("v_sub_u32 v38, 64, v38")
    a(f"v_mul_u32_u24 v39, {KC_STRIDE}, v36")
    a("v_lshl_add_u32 v39, v37, 3, v39")
    a("v_add_u32 v39, s30, v39")
    a("v_cmp_eq_u32 vcc, 3, v37")
    a("v_cmp_ne_u32 s[16:17], 0, v36")
    a("s_and_b64 s[16:17], vcc, s[16:17]")
    a("s_mul_hi_u32 s67, s34, 0xAAAAAAB")
    a(f"s_mul_i32 s67, s67, {32*C.fs0}")
    a(f"s_add_u32 s67, s67, {FL0}")
    a("s_and_b32 s18, s37, 2")
    a("s_lshl_b32 s18, s18, 3")

def conv(a, slow, wpre, early):
    a("buffer_load_dword v12, v11, s[24:27], s67 offen sc1")
    role_put(a, slow)
    a("v_lshlrev_b64 v[60:61], v38, v[60:61]")
    a("s_lshr_b32 s39, s39, s18")
    a("v_cndmask_b32 v60, 0, v60, s[16:17]")
    a("v_cndmask_b32 v61, 0, v61, s[16:17]")
    a.lg("ds_write_b64 v39, v[60:61]")
    a("s_lshl_b32 s39, s39, 16")
    a(f"s_add_u32 s68, s35, {UT_OFF}")
    a("s_lshl_b32 s70, s34, 6")
    a(f"s_add_u32 s70, s70, {XT_OFF}")
    a(f"s_add_u32 s71, s35, {HT_OFF}")
    a("s_barrier")
    role_get(a)
    early(a)
    a("s_lshl_b32 s72, s36, 12")
    a("s_add_u32 m0, s32, 512")
    ACC = 40; AR = 72; NR = 8; EP = 104; XR = 16
    atok = {}; btok = {}
    def load_a(c):
        r = AR + 4 * (c % NR)
        o = 16 * (c % 16)
        a.lg(f"ds_read2_b32 v[{r}:{r+1}], v{156 + c//16} offset0:{o} offset1:{o+1}")
        atok[c] = a.lg(f"ds_read2_b32 v[{r+2}:{r+3}], v{156 + c//16} offset0:{o+2} offset1:{o+3}")
    def breg(j, rho): return 4 * (8 * rho + j)
    def load_b(j, rho):
        r = breg(j, rho)
        btok[(j, rho)] = a.lg(f"ds_read_b128 a[{r}:{r+3}], v33 offset:{512*j+64*(7-rho)}")
    load_a(0); load_a(1)
    a(f"s_mov_b32 s97, {SPIN}")
    a("CV_chk:")
    a("s_waitcnt vmcnt(0)")
    a("v_cmp_ne_u32 vcc, s3, v12")
    a("s_cbranch_vccnz CV_again")
    a("CV_go:")
    slow("CV_again:")
    slow("s_sub_u32 s97, s97, 1")
    slow("s_cbranch_scc1 CV_go")
    slow("buffer_load_dword v12, v11, s[24:27], s67 offen sc1")
    slow("s_branch CV_chk")
    a.vm_issued = a.vm_done = 0
    for z in range(4):
        tu = a.vm(f"buffer_load_dwordx4 v3, s[24:27], s68 offen offset:{1024*z} sc1 lds")
    stamp(a, 4)
    a(f"s_mov_b32 s66, {FLQ}")
    fl = [(12, 10, "s66", 0)]
    a.wait(tu)
    for j in range(8): load_b(j, 0)
    stamp(a, 5)
    tk_ = {}
    def flagload():
        for vt, va, so, imm in fl: tk_["fl"] = a.vm(f"buffer_load_dword v{vt}, v{va}, s[24:27], {so} offen sc1")
    def flagchk():
        a.wait(tk_["fl"])
        a("v_cmp_ne_u32 vcc, s3, v12")
        a("s_cbranch_vccnz CV_fs")
        a("CV_fb:")
        slow("CV_fs:")
        poll(slow, fl)
        slow("s_branch CV_fb")
    def stl(z):
        if z == 0:
            a(f"s_add_u32 m0, s72, {K1_ST}")
            a(f"s_add_u32 s72, s72, {ST_OFF}")
        tk_["st"] = a.vm(f"buffer_load_dwordx4 v3, s[24:27], s72 offen offset:{1024*z} sc1 lds")
    def xl(t):
        tk_[t] = a.vm(f"buffer_load_dwordx2 v[{XR+2*t}:{XR+2*t+1}], v32, s[24:27], s70 offen sc1")
        a(f"s_add_u32 s70, s70, {8*36864}")
    timed = {C.cf0: flagload, C.cf1: flagchk}
    for z in range(4): timed[C.cf1 + 1 + 2 * z] = (lambda z=z: stl(z))
    for t in range(8): timed[C.cf1 + 9 + 2 * t] = (lambda t=t: xl(t))
    def ep_pieces(t):
        e = EP + (t % 2) * 24
        KV, STA, T0, O = e, e + 4, e + 12, e + 20
        toks = {}
        def p0_():
            if t == 0:
                a.wait(tk_["st"]); a("s_barrier")
            toks["kv"] = a.lg(f"ds_read_b64 v[{KV}:{KV+1}], v34 offset:{512+512*t}")
            a.lg(f"ds_read_b128 v[{STA}:{STA+3}], v35 offset:{2048*t}")
            toks["st"] = a.lg(f"ds_read_b128 v[{STA+4}:{STA+7}], v35 offset:{2048*t+16}")
        ps = [p0_]
        acc = ACC + 4 * t
        x = XR + 2 * t
        def mk(s, w=None):
            def f():
                if w: a.wait(*[toks[k] if isinstance(k, str) else tk_[k] for k in w])
                a(s)
            return f
        ps.append(mk(f"v_and_b32 v{T0}, s69, v{KV+1}", ["kv"]))
        ps.append(mk(f"v_lshlrev_b32 v{T0+1}, 16, v{KV+1}"))
        ps.append(mk(f"v_and_b32 v{T0+2}, s69, v{KV}"))
        ps.append(mk(f"v_lshlrev_b32 v{T0+3}, 16, v{KV}"))
        for r in range(4):
            ps.append(mk(f"v_fma_f32 v{T0+r}, v{T0+r}, s39, v{acc+r}"))
        ps.append(mk(f"v_lshlrev_b32 v{T0+4}, 16, v{x}", [t]))
        ps.append(mk(f"v_and_b32 v{T0+5}, s69, v{x}"))
        ps.append(mk(f"v_lshlrev_b32 v{T0+6}, 16, v{x+1}"))
        ps.append(mk(f"v_and_b32 v{T0+7}, s69, v{x+1}"))
        for r in range(4):
            ps.append(mk(f"v_fmac_f32 v{STA+2*r+1}, v{T0+4+r}, v{STA+2*r}", ["st"]))
        for r in range(4):
            ps.append(mk(f"v_fmac_f32 v{T0+4+r}, v{STA+2*r+1}, v{T0+r}"))
        ps.append(mk(f"v_cvt_pk_bf16_f32 v{O}, v{T0+4}, v{T0+5}"))
        ps.append(mk(f"v_cvt_pk_bf16_f32 v{O+1}, v{T0+6}, v{T0+7}"))
        def st(): a.vm(f"buffer_store_dwordx2 v[{O}:{O+1}], v7, s[24:27], s71 offen offset:{512*t} sc1")
        ps.append(st)
        return ps
    PF = 5
    pend = []
    nm = 0
    nexta = 2
    wpre = list(wpre); lastw = 0
    for c in range(64):
        i, rho = c // 8, c % 8
        for t in range(i, 8):
            j = t - i
            a.wait(atok[c], btok[(j, rho)])
            ra = AR + 4 * (c % NR); rb = breg(j, rho); acc = ACC + 4 * t
            src = "0" if c == 0 else f"v[{acc}:{acc+3}]"
            a(f"v_mfma_f32_16x16x32_bf16 v[{acc}:{acc+3}], v[{ra}:{ra+3}], a[{rb}:{rb+3}], {src}")
            nm += 1
            slots = 2
            if nm in timed:
                timed.pop(nm)(); slots -= 1
            if i == 0 and rho < 7:
                load_b(j, rho + 1); slots -= 1
            if nexta < 64 and nexta <= c + (2 if i == 0 else PF) and nexta - c < NR - 1 and (t == i or i > 0):
                load_a(nexta); nexta += 1; slots -= 2
            while slots > 0 and pend and pend[0][0] <= nm:
                pend.pop(0)[1](); slots -= 1
            if slots == 2 and wpre and nm > C.cf1 + 26 and nm >= lastw + 3:
                tk_["w"] = wpre.pop(0)(); lastw = nm
            if rho == 7 and t == i:
                ps = ep_pieces(t)
                st_ = max(nm, C.cep)
                pend.append((st_, ps[0]))
                pend += [(st_ + 5, p) for p in ps[1:]]
    assert not wpre and not timed
    print("conv tail items", len(pend))
    stamp(a, 6)
    a("s_nop 7")
    for _, p in pend: p()

def qwork(a, slow):
    SL, QR = 12, 64
    a("s_mul_i32 s31, s36, 9216")
    a("v_bfe_u32 v8, v2, 4, 1")
    a("v_bfe_u32 v9, v2, 1, 1")
    a("v_lshlrev_b32 v8, 4, v8")
    a("v_lshl_add_u32 v8, v9, 3, v8")
    a("v_bfe_u32 v9, v2, 2, 2")
    a("v_add_u32 v8, v8, v9")
    a("v_mul_u32_u24 v8, 1152, v8")
    a("v_and_b32 v9, 1, v2")
    a("v_lshl_add_u32 v8, v9, 3, v8")
    a("v_lshrrev_b32 v9, 5, v2")
    a("v_lshl_add_u32 v8, v9, 4, v8")
    a("s_mul_i32 s30, s36, 288")
    a(f"s_add_u32 s30, s30, {QL}")
    a("v_add_u32 v8, s30, v8")
    a("v_and_b32 v7, 7, v2")
    a("v_lshl_add_u32 v9, v9, 3, v7")
    a("v_lshlrev_b32 v9, 6, v9")
    a("v_bfe_u32 v6, v2, 3, 2")
    a("v_lshl_add_u32 v9, v6, 4, v9")
    a("s_mul_i32 s33, s34, 36864")
    a("s_add_u32 s30, s31, s33")
    a(f"s_add_u32 s30, s30, {XT_OFF}")
    a("v_lshrrev_b32 v5, 3, v2")
    a("v_mul_u32_u24 v6, 1152, v5")
    a("v_lshl_add_u32 v6, v7, 4, v6")
    a("v_add_u32 v6, s31, v6")
    a("s_lshl_b32 s33, s34, 5")
    a("s_lshl_b32 s31, s36, 3")
    a("s_add_u32 s33, s33, s31")
    a("v_add_u32 v5, s33, v5")
    ep_get(a)
    role_put(a, slow)
    a("s_barrier")
    stamp(a, 4)
    tt = []
    for e in range(9):
        for h in range(2): t = a.lg(f"ds_read_b64_tr_b16 v[{QR+4*e+2*h}:{QR+4*e+2*h+1}], v8 offset:{32*e + 4608*h}")
        tt.append(t)
    for e in range(9):
        a.wait(tt[e])
        a(f"buffer_store_dwordx4 v[{QR+4*e}:{QR+4*e+3}], v9, s[24:27], s30 offen sc1")
        a(f"s_add_u32 s30, s30, 1024")
        ts = a.lg(f"ds_read_b128 v[{SL+4*e}:{SL+4*e+3}], v6 offset:{QL + 128*e}")
    a("s_mov_b32 s31, 0x3f803f80")
    for i in range(4): a(f"v_mov_b32 v{48+i}, 0")
    a.wait(ts)
    for j in range(36):
        a(f"v_dot2c_f32_bf16 v{48 + j%2}, s31, v{SL+j}")
        a(f"v_dot2c_f32_bf16 v{50 + j%2}, v{SL+j}, v{SL+j}")
    a("s_nop 2")
    a("v_add_f32 v48, v48, v49")
    a("v_add_f32 v50, v50, v51")
    for ctrl in ("quad_perm:[1,0,3,2]", "quad_perm:[2,3,0,1]", "row_half_mirror"):
        a("s_nop 1")
        a(f"v_add_f32_dpp v48, v48, v48 {ctrl} row_mask:0xf bank_mask:0xf")
        a(f"v_add_f32_dpp v50, v50, v50 {ctrl} row_mask:0xf bank_mask:0xf")
    a(f"v_mul_f32 v48, {1.0/576!r}, v48")
    a(f"v_mul_f32 v50, {1.0/576!r}, v50")
    a("v_fma_f32 v50, -v48, v48, v50")
    a("v_max_f32 v50, 0, v50")
    a("v_add_f32 v50, 0x3727c5ac, v50")
    a("v_rsq_f32 v52, v50")
    a("v_lshlrev_b32 v5, 3, v5")
    a("v_mul_f32 v53, v48, v52")
    a("v_sub_f32 v53, 0, v53")
    a(f"s_mov_b32 s31, {ST_OFF}")
    a("v_cmp_eq_u32 vcc, 0, v7")
    a("s_and_saveexec_b64 s[38:39], vcc")
    a("buffer_store_dwordx2 v[52:53], v5, s[24:27], s31 offen sc1")
    a("s_mov_b64 exec, -1")
    stamp(a, 5)

def colsum(a, slow):
    a("s_sub_u32 s34, s7, 144")
    a("s_lshr_b32 s35, s34, 2")
    a("s_and_b32 s37, s34, 3")
    a("s_cmp_ge_u32 s35, 9")
    a(f"s_cselect_b32 s8, s{PWU}, s{PWG}")
    a(f"s_cselect_b32 s9, s{PWU+1}, s{PWG+1}")
    a("s_cselect_b32 s38, 9, 0")
    a(f"s_mov_b32 s10, {D*F*2}")
    a("s_mov_b32 s11, 0x00020000")
    a("s_sub_u32 s38, s35, s38")
    a("s_lshl_b32 s38, s38, 10")
    a("s_lshl_b32 s39, s37, 2")
    a("s_add_u32 s39, s39, s36")
    a(f"s_mul_i32 s39, s39, {36*F*2}")
    a("s_add_u32 s38, s38, s39")
    L = 112
    tl = []
    def ld(i):
        tl.append(a.vm(f"buffer_load_dwordx4 v[{L+4*i}:{L+4*i+3}], v3, s[8:11], s32 offen {C.ntcs}"))
        a(f"s_add_u32 s32, s32, {F*2}")
    a("s_mov_b32 s32, s38")
    a("s_cmp_ge_u32 s34, 64")
    a("s_cbranch_scc1 CS_noq")
    qwork(a, slow)
    a.vm_issued = a.vm_done = 0
    for i in range(C.hw): ld(i)
    a(f"s_waitcnt vmcnt({C.hw})")
    a("s_barrier")
    a("s_cmp_lg_u32 s36, 0")
    a("s_cbranch_scc1 CS_j")
    a(f"s_mul_i32 s38, s34, {C.fs0}")
    a(f"s_add_u32 s38, s38, {FLQ}")
    flag_store(a, 8, 38)
    a("s_branch CS_j")
    a("CS_noq:")
    a.vm_issued = a.vm_done = 0; del tl[:]
    for i in range(C.hw): ld(i)
    a(f"s_waitcnt vmcnt({C.hw})")
    ep_get(a)
    role_put(a, slow)
    a("CS_j:")
    a("s_nop 0")
    for e in range(8): a(f"v_mov_b32 v{8+e}, 0")
    for i in range(36):
        a.wait(tl[i])
        if i + C.hw < 36: ld(i + C.hw)
        for w in range(4):
            r = L + 4 * i + w
            a(f"v_lshlrev_b32 v6, 16, v{r}")
            a(f"v_and_b32 v7, s69, v{r}")
            a(f"v_add_f32 v{8+2*w}, v{8+2*w}, v6")
            a(f"v_add_f32 v{9+2*w}, v{9+2*w}, v7")
    a("v_lshlrev_b32 v6, 5, v0")
    a.lg("ds_write_b128 v6, v[8:11]")
    a.lg("ds_write_b128 v6, v[12:15] offset:16")
    a.wait_all(vm=False)
    a("s_barrier")
    a("v_lshlrev_b32 v6, 3, v0")
    tt = [a.lg(f"ds_read_b64 v[{8+2*e}:{9+2*e}], v6 offset:{2048*e}") for e in range(4)]
    a.wait(tt[3])
    for e in range(1, 4):
        a(f"v_add_f32 v8, v8, v{8+2*e}")
        a(f"v_add_f32 v9, v9, v{9+2*e}")
    a(f"s_mul_i32 s38, s37, {2*F*4}")
    a("s_lshl_b32 s39, s35, 11")
    a("s_add_u32 s38, s38, s39")
    a(f"s_add_u32 s38, s38, {CS_OFF}")
    a.vm("buffer_store_dwordx2 v[8:9], v6, s[24:27], s38 offen sc1")
    a("s_branch HELP_done")

def pack(a, slow):
    a("s_sub_u32 s34, s7, 216")
    a("s_cmp_lt_u32 s34, 36")
    a("s_cbranch_scc1 PACK_go")
    a("s_waitcnt vmcnt(0)")
    ep_get(a)
    role_put(a, slow)
    a("s_barrier")
    a("s_branch HELP_done")
    a("PACK_go:")
    srd(a, 8, PWD, PWD + 1, F * D * 2)
    a(f"s_mul_i32 s35, s34, {4*36864}")
    a("s_mul_i32 s37, s36, 9216")
    a("s_add_u32 s35, s35, s37")
    tl = []
    def unit(u):
        for n in range(9):
            if n % 4 == 0:
                a(f"s_add_u32 m0, s37, {(u%3)*36864 + n*1024}")
                a(f"s_add_u32 s38, s35, {u*36864 + n*1024}")
            t = a.vm(f"buffer_load_dwordx4 v3, s[8:11], s38 offen offset:{(n%4)*1024} {C.ntpk} lds")
        tl.append(t)
    for u in range(C.pw): unit(u)
    a(f"s_waitcnt vmcnt({9*C.pw})")
    ep_get(a)
    role_put(a, slow)
    a("s_mul_hi_u32 s30, s34, 0x1C71C71D")
    a("s_mul_i32 s39, s30, 9")
    a("s_sub_u32 s39, s34, s39")
    a("s_lshl_b32 s39, s39, 2")
    a("s_lshl_b32 s33, s30, 2")
    a("s_add_u32 s33, s33, s36")
    a(f"s_mul_i32 s33, s33, {324*1024}")
    a(f"s_add_u32 s33, s33, {WD_OFF}")
    a("v_lshrrev_b32 v5, 2, v2")
    a("v_mul_u32_u24 v5, 1152, v5")
    a("v_and_b32 v6, 3, v2")
    a("s_mul_i32 s66, s36, 288")
    a("v_add_u32 v5, s66, v5")
    a("v_lshl_add_u32 v12, v6, 3, v5")
    a("v_lshl_add_u32 v5, v6, 4, v5")
    for e in range(4):
        a(f"s_add_u32 s66, s30, {e}")
        a("s_and_b32 s66, s66, 3")
        a("s_lshl_b32 s66, s66, 6")
        a(f"v_add_u32 v{8+e}, s66, v5")
    for u in range(4):
        a(f"s_add_u32 s66, s39, {u}")
        a("s_mul_hi_u32 s31, s66, 0x1C71C71D")
        a("s_mul_i32 s67, s31, 9")
        a("s_sub_u32 s66, s66, s67")
        a("s_add_u32 s67, s66, 8")
        a("s_cmp_ge_u32 s67, 9")
        a("s_cselect_b32 s68, 9, 0")
        a("s_sub_u32 s67, s67, s68")
        a("s_bitcmp1_b32 s31, 0")
        a("s_cselect_b32 s66, s67, s66")
        a("s_lshr_b32 s67, s66, 1")
        a("s_lshl_b32 s67, s67, 3")
        a("s_and_b32 s68, s66, 5")
        a("s_add_u32 s67, s67, s68")
        a("s_lshl_b32 s68, s31, 1")
        a("s_add_u32 s67, s67, s68")
        a("s_add_u32 s68, s31, 16")
        a("s_cmp_eq_u32 s66, 8")
        a("s_cselect_b32 s67, s68, s67")
        a("s_mul_i32 s70, s67, 7")
        a("s_add_u32 s73, s70, 5")
        a("s_mul_i32 s68, s67, 5")
        a(f"s_add_u32 s68, s68, {2*C.ka}")
        a("s_lshl_b32 s72, s67, 1")
        a(f"s_add_u32 s74, s72, 180")
        a(f"s_cmp_ge_u32 s67, {C.ka}")
        a("s_cselect_b32 s70, s68, s70")
        a("s_cselect_b32 s73, s74, s73")
        a("s_lshl_b32 s70, s70, 10")
        a("s_add_u32 s70, s70, s33")
        a("s_add_u32 s71, s70, 4096")
        a("s_lshl_b32 s73, s73, 10")
        a("s_add_u32 s73, s73, s33")
        a("s_lshl_b32 s72, s72, 10")
        a("s_add_u32 s72, s72, s33")
        a(f"s_add_u32 s72, s72, {252*1024}")
        a.wait(tl[u])
        a("s_barrier")
        if u + C.pw < 4 and (u + C.pw < 3 or u >= 1): unit(u + C.pw)
        if u == 1 and C.pw == 3: unit(3)
        if u == 2:
            for e in range(5): a(f"v_add_u32 v{8+e}, {2*36864}, v{8+e}")
        if u == 3:
            for e in range(5): a(f"v_subrev_u32 v{8+e}, {2*36864}, v{8+e}")
        R = 16 + 36 * u
        uo = 36864 if u == 1 else 0
        lst = []
        for e in (1, 2):
            for ab in range(2): lst.append((8 + e, 8 * ab, "s70", ((e - 1) * 2 + ab) * 1024))
        lst.append((12, 256, "s71", 0))
        for ab in range(2): lst.append((11, 8 * ab, "s73", ab * 1024))
        for ab in range(2): lst.append((8, 8 * ab, "s72", ab * 1024))
        tt = []
        for n, (va, off, p1, p2) in enumerate(lst):
            r = R + 4 * n
            a.lg(f"ds_read_b64_tr_b16 v[{r}:{r+1}], v{va} offset:{uo + off}")
            tt.append(a.lg(f"ds_read_b64_tr_b16 v[{r+2}:{r+3}], v{va} offset:{uo + off + 16*1152}"))
        for n, (va, off, p1, p2) in enumerate(lst):
            r = R + 4 * n
            a.wait(tt[n])
            so, imm = p1, p2
            a.vm(f"buffer_store_dwordx4 v[{r}:{r+3}], v3, s[24:27], {so} offen offset:{imm} sc1")
    a("s_barrier")
```

```python
import sys
from gen2 import *
C.stamps = True
if sys.argv[1] == "cyc": C.stamp_ins = "s_memtime"
base = dict(vars(C))
for i, spec in enumerate(sys.argv[2:]):
    for k in base:
        if not k.startswith("_"): setattr(C, k, base[k])
    for kv in spec.split(";"):
        if not kv: continue
        k, v = kv.split("=", 1)
        setattr(C, k, set(v.split(",")) if k == "abl" else eval(v))
    build(*kernel(), f"v{i}.s")
```
